```python
import torch

def _softmax(x, axis=-1):
    return torch.softmax(x, dim=axis)
def _gelu(x):
    return torch.nn.functional.gelu(x, approximate="tanh")
def _silu(x):
    return torch.nn.functional.silu(x)
def _sigmoid(x):
    return torch.sigmoid(x)
def _layernorm(x, axis=-1, eps=1e-5):
    m = x.mean(dim=axis, keepdim=True)
    v = x.var(dim=axis, keepdim=True, unbiased=False)
    return (x - m) / torch.sqrt(v + eps)
def _scatter_add(tgt, idx, src, axis=0):
    return tgt.clone().index_add_(axis, idx, src)
def _segment_sum(src, seg, n):
    out = torch.zeros((n,) + src.shape[1:], dtype=src.dtype)
    return out.index_add_(0, seg, src)
def _pad(x, pw):
    flat = tuple(v for pair in reversed(pw) for v in pair)
    return torch.nn.functional.pad(x, flat)

kernel_name = 'sequential_preLN__spectral_gfnet__mixer_s_mlp__prompt'

def setup_inputs():

    _w = (lambda a: (lambda t: t.to(torch.bfloat16) if t.is_floating_point() else t)(torch.as_tensor(a)))
    def _A_setup():
        B, S, D = 1, 2048, 1024
        Df = D // 2 + 1
        return {
            "x": _w((lambda *s: torch.randn(*s, dtype=torch.bfloat16) * 0.05)(B, S, D)),
            "w_r": _w((lambda *s: torch.randn(*s, dtype=torch.bfloat16) * 0.4)(S, Df) * 0.02),
            "w_i": _w((lambda *s: torch.randn(*s, dtype=torch.bfloat16) * 0.4)(S, Df) * 0.02),
        }
    _A_in = _A_setup()

    def _B_setup():
        B, S, D, F = 1, 2048, 1024, 3584
        return {
            "x":  _w((lambda *s: torch.randn(*s, dtype=torch.bfloat16) * 0.05)(B, S, D)),
            "w1": _w((lambda *s: torch.randn(*s, dtype=torch.bfloat16) * 0.8)(D, D) * (D ** -0.5)),
            "w2": _w((lambda *s: torch.randn(*s, dtype=torch.bfloat16) * 0.8)(D, D) * (D ** -0.5)),
            "w3": _w((lambda *s: torch.randn(*s, dtype=torch.bfloat16) * 0.8)(D, F) * (D ** -0.5)),
            "w4": _w((lambda *s: torch.randn(*s, dtype=torch.bfloat16) * 0.8)(F, D) * (F ** -0.5)),
        }
    _B_in = _B_setup()

    return {
        "A_x": _A_in["x"],
        "A_w_r": _A_in["w_r"],
        "A_w_i": _A_in["w_i"],
        "B_x": _B_in["x"],
        "B_w1": _B_in["w1"],
        "B_w2": _B_in["w2"],
        "B_w3": _B_in["w3"],
        "B_w4": _B_in["w4"],
    }

def reference(A_x, A_w_r, A_w_i, B_x, B_w1, B_w2, B_w3, B_w4):
    def _A_ref(x, w_r, w_i):
        B, S, D = x.shape
        X = (lambda x, axes=(-2,-1): torch.fft.rfft2(x.float(), dim=axes))(x, axes=(-2, -1))
        W = w_r + 1j * w_i
        X = X * W
        y = (lambda x, s, axes=(-2,-1): torch.fft.irfft2(x, s=s, dim=axes).to(torch.bfloat16))(X, (S, D), axes=(-2, -1))
        return y

    def _B_ref(x, w1, w2, w3, w4):
        B, S, D = x.shape
        h = _gelu(_layernorm(x, axis=-1) @ w1)
        c = D // 4
        g0 = _pad(h[:, :, 0*c:1*c], ((0, 0), (1, 0), (0, 0)))[:, :S, :]
        g1 = _pad(h[:, :, 1*c:2*c], ((0, 0), (0, 1), (0, 0)))[:, 1:, :]
        g2 = _pad(h[:, :, 2*c:3*c], ((0, 0), (2, 0), (0, 0)))[:, :S, :]
        g3 = _pad(h[:, :, 3*c:   ], ((0, 0), (0, 2), (0, 0)))[:, 2:, :]
        hs = torch.concatenate([g0, g1, g2, g3], axis=-1) @ w2
        x1 = x + hs
        h2 = _gelu(_layernorm(x1, axis=-1) @ w3) @ w4
        return x1 + h2

    x = A_x
    h = x + _A_ref(_layernorm(x, axis=-1), A_w_r, A_w_i)
    h2 = h + _B_ref(_layernorm(h, axis=-1), B_w1, B_w2, B_w3, B_w4)
    return h2
```

```python
import re

def v(i, n=1): return f"v{i}" if n == 1 else f"v[{i}:{i+n-1}]"
def a(i, n=1): return f"a{i}" if n == 1 else f"a[{i}:{i+n-1}]"
def s(i, n=1): return f"s{i}" if n == 1 else f"s[{i}:{i+n-1}]"

_REG = re.compile(r'^(-?)(?:abs\()?\|?([vas])(?:(\d+)|\[(\d+):(\d+)\])\|?\)?$')

def regs_of(op):
    op = op.strip()
    if op in ('vcc',): return {('s', 'vcc')}
    if op in ('vcc_lo', 'vcc_hi'): return {('s', 'vcc')}
    if op in ('exec', 'exec_lo', 'exec_hi'): return {('s', 'exec')}
    if op == 'm0': return {('s', 'm0')}
    if op == 'scc': return {('s', 'scc')}
    m = _REG.match(op)
    if not m: return set()
    k = m.group(2)
    if m.group(3) is not None: return {(k, int(m.group(3)))}
    return {(k, i) for i in range(int(m.group(4)), int(m.group(5)) + 1)}

TRANS = ('v_exp_f32', 'v_log_f32', 'v_rcp_f32', 'v_rsq_f32', 'v_sqrt_f32', 'v_sin_f32', 'v_cos_f32')

class Ins:
    __slots__ = ('text', 'op', 'rd', 'wr', 'kind', 'tok', 'need', 'nop', 'vm', 'lgkm', 'passes', 'srcc', 'dpp', 'stdata', 'wide', 'comment')
    def __init__(self, text, tok=None, need=None):
        self.text = text; self.tok = tok; self.need = need
        self.nop = 0; self.vm = None; self.lgkm = None
        self.passes = 0; self.srcc = set(); self.dpp = False; self.stdata = set(); self.wide = False
        self.parse()
    def parse(self):
        t = self.text.split(';')[0].strip()
        self.rd = set(); self.wr = set(); self.kind = 'other'
        if not t or t.endswith(':') or t.startswith('.'):
            self.op = ''; self.kind = 'label' if t.endswith(':') else 'dir'; return
        parts = t.split(None, 1)
        self.op = op = parts[0]
        rest = parts[1] if len(parts) > 1 else ''
        ops = []; cur = ''; depth = 0
        for ch in rest:
            if ch == '[': depth += 1
            if ch == ']': depth -= 1
            if ch == ',' and depth == 0: ops.append(cur.strip()); cur = ''
            else: cur += ch
        if cur.strip(): ops.append(cur.strip())
        mods = ''
        if ops:
            last = ops[-1].split(None, 1)
            ops[-1] = last[0]
            mods = last[1] if len(last) > 1 else ''
        R = [regs_of(o) for o in ops]
        allr = lambda lst: set().union(*lst) if lst else set()
        if op.startswith('v_mfma'):
            self.kind = 'mfma'; self.wr = R[0]; self.rd = allr(R[1:]); self.srcc = R[3]
            self.passes = 8 if '32x32' in op else 4
        elif op.startswith('v_'):
            self.kind = 'valu'
            base = op.replace('_e32', '').replace('_e64', '').replace('_dpp', '').replace('_sdwa', '')
            self.dpp = ('quad_perm' in mods or 'row_' in mods or op.endswith('_dpp'))
            if base in TRANS: self.kind = 'trans'
            if base.startswith('v_permlane') and 'swap' in base:
                self.wr = R[0] | R[1]; self.rd = R[0] | R[1]; self.kind = 'permlane'
            elif base.startswith('v_cmp'):
                self.wr = R[0]; self.rd = allr(R[1:])
            elif base in ('v_add_co_u32', 'v_sub_co_u32', 'v_addc_co_u32', 'v_subb_co_u32', 'v_mad_u64_u32'):
                self.wr = R[0] | R[1]; self.rd = allr(R[2:])
            else:
                self.wr = R[0]; self.rd = allr(R[1:])
                if base in ('v_fmac_f32', 'v_pk_fmac_f16', 'v_dot2c_f32_bf16', 'v_writelane_b32') or self.dpp or 'dst_unused:UNUSED_PRESERVE' in mods:
                    self.rd |= R[0]
                if base in ('v_readlane_b32', 'v_readfirstlane_b32'): self.kind = 'readlane'
            if base == 'v_cndmask_b32' and len(ops) == 3: self.rd |= {('s', 'vcc')}
        elif op.startswith('buffer_load') or op.startswith('global_load'):
            self.kind = 'vmload'
            if ' lds' in (' ' + mods) or '_lds_' in op:
                self.kind = 'dma'; self.rd = allr(R) | {('s', 'm0')}
            else:
                self.wr = R[0]; self.rd = allr(R[1:])
                if 'd16' in op: self.rd |= R[0]
        elif op.startswith('buffer_store') or op.startswith('global_store'):
            self.kind = 'vmstore'; self.rd = allr(R)
            self.stdata = R[0] if op.startswith('buffer') else R[1]
            self.wide = 'x4' in op or 'x3' in op
        elif op.startswith('buffer_atomic') or op.startswith('global_atomic'):
            self.kind = 'vmstore'; self.rd = allr(R)
            if 'sc0' in mods: self.kind = 'vmload'; self.wr = R[0]
        elif op.startswith('buffer_wbl2') or op.startswith('buffer_inv'):
            self.kind = 'vmstore'
        elif op.startswith('ds_read') or op.startswith('ds_bpermute') or op.startswith('ds_swizzle') or op.startswith('ds_permute'):
            self.kind = 'dsread'; self.wr = R[0]; self.rd = allr(R[1:])
        elif op.startswith('ds_write'):
            self.kind = 'dswrite'; self.rd = allr(R)
        elif op.startswith('s_load') or op.startswith('s_buffer_load') or op in ('s_memtime', 's_memrealtime'):
            self.kind = 'smem'; self.wr = R[0]; self.rd = allr(R[1:])
        elif op.startswith('s_'):
            self.kind = 'salu'
            if op.startswith('s_cmp') or op.startswith('s_bitcmp'):
                self.rd = allr(R)
            elif op in ('s_barrier', 's_nop', 's_waitcnt', 's_endpgm', 's_setprio', 's_sleep') or op.startswith('s_cbranch') or op == 's_branch':
                self.kind = 'ctl'
            elif 'saveexec' in op:
                self.wr = R[0] | {('s', 'exec')}; self.rd = allr(R[1:])
            else:
                self.wr = R[0]; self.rd = allr(R[1:])
                if op in ('s_addk_i32', 's_mulk_i32'): self.rd |= R[0]
        else:
            raise ValueError('unknown op ' + t)

VAL = ('valu', 'trans', 'permlane', 'readlane')

class Prog:
    def __init__(self):
        self.ins = []
        self.marks = {}
    def __call__(self, text, tok=None, need=None):
        for line in text.split('\n'):
            line = line.strip()
            if line: self.ins.append(Ins(line, tok, need))
        return self
    def wait_tok(self, *toks):
        i = Ins('.wait'); i.kind = 'wait'; i.need = set(toks); self.ins.append(i)
    def wait_all(self, vm=True, lgkm=True):
        i = Ins('.waitall'); i.kind = 'waitall'; i.need = (vm, lgkm); self.ins.append(i)
    def mark(self, name): self.marks[name] = len(self.ins)
    def extend(self, lst):
        for x in lst:
            if isinstance(x, tuple): self(x[0], **x[1])
            elif callable(x): x()
            else: self(x)

    def resolve(self):
        vmq = []
        lgq = []
        hist = []
        for I in self.ins:
            if I.kind in ('label', 'dir'):
                continue
            needvm = None; needlg = None
            if I.kind == 'wait':
                for idx, (tok, wr) in enumerate(vmq):
                    if tok in I.need: needvm = len(vmq) - 1 - idx
            elif I.kind == 'waitall':
                if I.need[0] and vmq: needvm = 0
                if I.need[1] and lgq: needlg = 0
            else:
                touch = I.rd | I.wr
                for idx, (tok, wr) in enumerate(vmq):
                    if wr & touch:
                        if I.kind == 'vmload' and 'd16' in I.op and not (wr & (I.rd - I.wr)):
                            continue
                        if I.kind == 'vmload' and not (wr & I.rd):
                            continue
                        needvm = len(vmq) - 1 - idx
                for idx, (kind, wr) in enumerate(lgq):
                    if wr & touch:
                        if I.kind == 'dsread' and kind == 'dsread' and not (wr & I.rd): continue
                        if any(k == 'smem' for k, _ in lgq): needlg = 0
                        else:
                            n = len(lgq) - 1 - idx
                            needlg = n if needlg is None else min(needlg, n)
            if I.op == 's_waitcnt':
                m = re.search(r'vmcnt\((\d+)\)', I.text)
                if m: n = int(m.group(1)); vmq = vmq[len(vmq) - n:] if n else []
                m = re.search(r'lgkmcnt\((\d+)\)', I.text)
                if m: n = int(m.group(1)); lgq = lgq[len(lgq) - n:] if n else []
            if needvm is not None:
                needvm = min(needvm, 63)
                I.vm = needvm; vmq = vmq[len(vmq) - needvm:] if needvm else []
            if needlg is not None:
                needlg = min(needlg, 15)
                I.lgkm = needlg; lgq = lgq[len(lgq) - needlg:] if needlg else []
            if I.vm is not None or I.lgkm is not None:
                hist.append(None)
            if I.kind in ('wait', 'waitall'):
                continue
            req = 0; dist = 0
            for P in reversed(hist):
                if dist > 24: break
                if P is not None:
                    n = hazard(P, I)
                    if n - dist > req: req = n - dist
                    dist += 1 + (0 if P.op != 's_nop' else int(P.text.split()[1]))
                else:
                    dist += 1
            I.nop = req
            for _ in range(req): hist.append(None)
            hist.append(I)
            if len(hist) > 64: hist = hist[-48:]
            if I.kind in ('vmload', 'dma', 'vmstore'):
                vmq.append((I.tok, set(I.wr)))
                assert len(vmq) <= 63 or True
                self.maxvm = max(getattr(self, 'maxvm', 0), len(vmq))
            elif I.kind in ('dsread', 'dswrite', 'smem'):
                lgq.append((I.kind, set(I.wr)))
                if I.kind == 'smem' and I.op not in ('s_load_dword',): lgq.append((I.kind, set()))
        self.end_vm = len(vmq)

    @staticmethod
    def render(I):
        out = []
        if I.vm is not None or I.lgkm is not None:
            w = 's_waitcnt'
            if I.vm is not None: w += f' vmcnt({I.vm})'
            if I.lgkm is not None: w += f' lgkmcnt({I.lgkm})'
            out.append('    ' + w)
        n = I.nop
        while n > 0:
            k = min(n, 16); out.append(f'    s_nop {k-1}'); n -= k
        if I.kind in ('wait', 'waitall'): return out
        if I.kind == 'label': out.append(I.text)
        else: out.append('    ' + I.text)
        return out

    def fold(self, marks, nloop, label, cnt_reg):
        pos = [self.marks[m] for m in marks]
        assert len(pos) == nloop + 1
        L = pos[1] - pos[0]
        for b in range(nloop):
            assert pos[b + 1] - pos[b] == L, 'body length differs'
        body = self.ins[pos[0]:pos[1]]
        for b in range(1, nloop):
            other = self.ins[pos[b]:pos[b + 1]]
            for x, y in zip(body, other):
                assert x.text == y.text, (x.text, y.text)
                x.nop = max(x.nop, y.nop)
                if y.vm is not None: x.vm = y.vm if x.vm is None else min(x.vm, y.vm)
                if y.lgkm is not None: x.lgkm = y.lgkm if x.lgkm is None else min(x.lgkm, y.lgkm)
        pre = [Ins(f's_mov_b32 {cnt_reg}, {nloop}'), Ins(f'{label}:')]
        post = [Ins(f's_sub_u32 {cnt_reg}, {cnt_reg}, 1'), Ins(f's_cmp_lg_u32 {cnt_reg}, 0'), Ins(f's_cbranch_scc1 {label}')]
        self.ins = self.ins[:pos[0]] + pre + body + post + self.ins[pos[nloop]:]
        self.marks = {}

    def text(self):
        out = []
        for I in self.ins: out += self.render(I)
        return '\n'.join(out) + '\n'

def hazard(P, I):
    n = 0
    vr = lambda S: {r for r in S if r[0] in 'va'}
    sr = lambda S: {r for r in S if r[0] == 's'}
    if P.kind in VAL:
        w = vr(P.wr)
        if I.kind == 'mfma' and w & I.rd: n = max(n, 2)
        if I.kind == 'permlane' and w & I.rd: n = max(n, 2)
        if I.dpp and w & I.rd: n = max(n, 2)
        if I.kind == 'readlane' and w & I.rd: n = max(n, 1)
        if P.kind == 'trans' and I.kind in VAL + ('vmstore', 'dswrite', 'dsread', 'vmload', 'dma') and I.kind != 'trans' and w & I.rd: n = max(n, 1)
        if P.kind == 'trans' and I.kind == 'trans' and w & I.rd: n = max(n, 1)
        if 'op_sel' in P.text and not P.op.startswith('v_pk') and I.kind in VAL and w & (I.rd | I.wr): n = max(n, 1)
        if 'sdwa' in P.text and I.kind in VAL and w & (I.rd | I.wr): n = max(n, 1)
        ws = sr(P.wr)
        if ws:
            if I.kind in ('vmload', 'vmstore', 'dma') and ws & I.rd: n = max(n, 5)
            if I.kind in VAL and ws & I.rd: n = max(n, 4 if I.kind == 'readlane' or 'writelane' in I.op else 2)
            if I.kind in ('salu', 'smem') and ws & I.rd: n = max(n, 1)
            if ('s', 'exec') in ws: n = max(n, 5 if I.dpp else 4)
    if P.kind == 'salu':
        if ('s', 'm0') in P.wr and I.kind == 'dma': n = max(n, 1)
    if P.kind == 'mfma':
        big = P.passes == 8
        D = P.wr
        if I.kind == 'mfma':
            if D & I.srcc and not (D == I.srcc and P.passes == I.passes): n = max(n, 10 if big else 6)
            if D & (I.rd - I.srcc) or (D & I.rd and D != I.srcc and not (D & I.srcc)): n = max(n, 12 if big else 8)
            ab = set()
            if D & I.wr and not (D == I.srcc): n = max(n, 12 if big else 8)
        elif I.kind in VAL + ('vmload', 'vmstore', 'dma', 'dsread', 'dswrite'):
            if D & (I.rd | I.wr): n = max(n, 12 if big else 8)
            if I.kind in VAL and P.srcc & I.wr: n = max(n, 7 if big else 3)
    if P.kind == 'vmstore' and P.wide and P.stdata & I.wr:
        n = max(n, 2 if I.kind in VAL else 1)
    return n
```

```python
from kern import *
from layout import *
from gemm import fhex, flat

class Alloc:
    def __init__(self, n=1): self.n = n
    def __call__(self, k=1, al=2):
        if k > 1: self.n = -(-self.n // al) * al
        r = self.n; self.n += k; assert self.n <= 256, self.n; return r

def sincos(p, idx, den, c, s_, t):
    p(f'v_cvt_f32_u32 v{t}, v{idx}'); p(f'v_mul_f32 v{t}, {fhex(1.0/den)}, v{t}')
    p(f'v_cos_f32 v{c}, v{t}'); p(f'v_sin_f32 v{s_}, v{t}')

def angle_list(p, base, step_reg, offs, den, outs, tmp, mask):
    for i, o in enumerate(offs):
        t = tmp + (i % 4)
        p(f'v_add_u32 v{t}, {o}, v{base}'); p(f'v_mul_u32_u24 v{t}, v{t}, v{step_reg}'); p(f'v_and_b32 v{t}, {mask}, v{t}')
        sincos(p, t, den, outs[i][0], outs[i][1], t)

def cmul_tw(p, re, im, twc, tws, t, n):
    for i in range(0, n, 2):
        p(f'v_pk_mul_f32 {v(t+i,2)}, {v(im+i,2)}, {v(tws+i,2)}')
    for i in range(0, n, 2):
        p(f'v_pk_mul_f32 {v(im+i,2)}, {v(im+i,2)}, {v(twc+i,2)}')
    for i in range(0, n, 2):
        p(f'v_pk_fma_f32 {v(im+i,2)}, {v(re+i,2)}, {v(tws+i,2)}, {v(im+i,2)} neg_lo:[1,0,0] neg_hi:[1,0,0]')
    for i in range(0, n, 2):
        p(f'v_pk_fma_f32 {v(re+i,2)}, {v(re+i,2)}, {v(twc+i,2)}, {v(t+i,2)}')

def wave_sum(p, regs, sdst):
    for m in ['row_shr:1 row_mask:0xf', 'row_shr:2 row_mask:0xf', 'row_shr:4 row_mask:0xf', 'row_shr:8 row_mask:0xf', 'row_bcast:15 row_mask:0xa', 'row_bcast:31 row_mask:0xc']:
        for r in regs: p(f'v_add_f32_dpp v{r}, v{r}, v{r} {m} bank_mask:0xf')
    for r, d in zip(regs, sdst): p(f'v_readlane_b32 s{d}, v{r}, 63')

def layernorm2(p, X, sm, sq, sS, scale=None):
    for r in range(2):
        p(f'v_pk_add_f32 {v(sm+2*r,2)}, {v(X[r],2)}, {v(X[r]+2,2)}')
        for i in range(4, 16, 2): p(f'v_pk_add_f32 {v(sm+2*r,2)}, {v(sm+2*r,2)}, {v(X[r]+i,2)}')
    for r in range(2): p(f'v_add_f32 v{sm+2*r}, v{sm+2*r}, v{sm+2*r+1}')
    wave_sum(p, [sm, sm + 2], [sS, sS + 2])
    for r in range(2): p(f'v_mov_b32 v{sm+2*r}, s{sS+2*r}')
    for r in range(2): p(f'v_mul_f32 v{sm+2*r}, {fhex(1/1024)}, v{sm+2*r}')
    for r in range(2):
        for i in range(0, 16, 2): p(f'v_pk_add_f32 {v(X[r]+i,2)}, {v(X[r]+i,2)}, {v(sm+2*r,2)} op_sel_hi:[1,0] neg_lo:[0,1] neg_hi:[0,1]')
    for r in range(2):
        p(f'v_pk_mul_f32 {v(sq+2*r,2)}, {v(X[r],2)}, {v(X[r],2)}')
        for i in range(2, 16, 2): p(f'v_pk_fma_f32 {v(sq+2*r,2)}, {v(X[r]+i,2)}, {v(X[r]+i,2)}, {v(sq+2*r,2)}')
    for r in range(2): p(f'v_add_f32 v{sq+2*r}, v{sq+2*r}, v{sq+2*r+1}')
    wave_sum(p, [sq, sq + 2], [sS + 4, sS + 6])
    for r in range(2):
        p(f'v_mov_b32 v{sq+2*r}, s{sS+4+2*r}'); p(f'v_mul_f32 v{sq+2*r}, {fhex(1/1024)}, v{sq+2*r}')
        p(f'v_add_f32 v{sm+2*r}, {fhex(1e-5)}, v{sq+2*r}'); p(f'v_rsq_f32 v{sm+2*r}, v{sm+2*r}')
    for r in range(2):
        for i in range(0, 16, 2): p(f'v_pk_mul_f32 {v(X[r]+i,2)}, {v(X[r]+i,2)}, {v(sm+2*r,2)} op_sel_hi:[1,0]')

def head(p, name, prof, ptrs):
    p(f's_cmp_ge_u32 s2, 256'); p(f's_cbranch_scc1 L_{name}_end')
    prof.start(p)
    for reg, off in ptrs: p(f's_load_dwordx2 s[{reg}:{reg+1}], s[0:1], {off}')
    p('v_lshrrev_b32 v1, 6, v0'); p('v_readfirstlane_b32 s32, v1')

def tail(p, name, prof, lds, nv, na=0):
    prof.stamp(p)
    if prof.on: p.wait_all()
    prof.finish(p, WS_END)
    p(f'L_{name}_end:'); p('s_endpgm')
    p.resolve()
    nv = -(-nv // 4) * 4
    return dict(name=name, body=p.text(), nvgpr=nv+na, accum=nv, grid=256, block=256, lds=lds)

M32 = 'v_mfma_f32_32x32x16_bf16'
M16 = 'v_mfma_f32_16x16x32_bf16'

def gen_k1(name, prof=False, st=''):
    p = Prog(); pr = Prof(prof); al = Alloc(1)
    sX, sWR, sWI, sWS = 4, 8, 10, 6
    rX, rWR, rWI, rXF, rWT = 12, 16, 20, 24, 28
    sWave, sT, sT2, sS = 32, 33, 34, 36
    vT = 0
    head(p, name, pr, [(sX, 0), (sWR, 8), (sWI, 16), (sWS, 80)])
    vL = al(); t0, t1, t2, t3 = al(), al(), al(), al()
    p(f'v_and_b32 v{vL}, 63, v0')
    vx = al()
    p(f's_lshr_b32 s{sT}, s2, 5'); p(f's_lshl_b32 s{sT}, s{sT}, 8'); p(f's_and_b32 s{sT2}, s2, 31'); p(f's_add_u32 s{sT}, s{sT}, s{sT2}')
    p(f's_lshl_b32 s{sT2}, s{sWave}, 6'); p(f's_add_u32 s{sT}, s{sT}, s{sT2}'); p(f's_lshl_b32 s{sT}, s{sT}, 11')
    p(f'v_lshlrev_b32 v{vx}, 4, v{vL}'); p(f'v_add_u32 v{vx}, s{sT}, v{vx}')
    vx1 = al(); p(f'v_add_u32 v{vx1}, {32*2048}, v{vx}')
    vw = al(4); vz = al(4)
    p(f's_lshr_b32 s{sT}, s2, 6'); p(f's_lshl_b32 s{sT}, s{sT}, 9'); p(f's_and_b32 s{sT2}, s2, 63'); p(f's_add_u32 s{sT}, s{sT}, s{sT2}')
    p(f'v_and_b32 v{t0}, 1, v{vT}'); p(f'v_lshlrev_b32 v{t0}, 8, v{t0}'); p(f'v_add_u32 v{t0}, s{sT}, v{t0}')
    p(f'v_lshrrev_b32 v{t1}, 1, v{vT}')
    p(f'v_mul_u32_u24 v{vw}, 1026, v{t0}'); p(f'v_lshl_add_u32 v{vw}, v{t1}, 3, v{vw}')
    for u in range(1, 4): p(f'v_add_u32 v{vw+u}, {u*64*1026}, v{vw}')
    p.wait_all()
    srd(p, rX, sX, 4 * MB); srd(p, rWR, sWR, 2048 * 1026); srd(p, rWI, sWI, 2048 * 1026)
    X = [al(16), al(16)]; raw = al(16)
    for r in range(2):
        for i in range(2): p(f'buffer_load_dwordx4 {v(raw+8*r+4*i,4)}, v{vx1 if r else vx}, s[{rX}:{rX+3}], 0 offen offset:{1024*i}')
    wr = al(8); wi = al(8); zr = al(4); zi = al(4)
    for u in range(4):
        p(f'buffer_load_dwordx2 {v(wr+2*u,2)}, v{vw+u}, s[{rWR}:{rWR+3}], 0 offen')
        p(f'buffer_load_dwordx2 {v(wi+2*u,2)}, v{vw+u}, s[{rWI}:{rWI+3}], 0 offen')
    p(f'v_and_b32 v{t2}, 7, v{t1}'); p(f'v_cmp_eq_u32 vcc, 0, v{t2}')
    p(f'v_lshlrev_b32 v{t1}, 3, v{t1}'); p(f'v_sub_u32 v{t1}, 1024, v{t1}')
    vsp = al(); p(f'v_cndmask_b32 v{vsp}, 0, -1, vcc'); p(f'v_mov_b32 v{t3}, 0x40000000')
    for u in range(4):
        p(f'v_sub_u32 v{t2}, {2048 - 64*u}, v{t0}'); p(f'v_and_b32 v{t2}, 0x7ff, v{t2}')
        p(f'v_mul_u32_u24 v{t2}, 1026, v{t2}'); p(f'v_add_u32 v{t2}, v{t2}, v{t1}')
        p(f'v_cndmask_b32 v{vz+u}, v{t3}, v{t2}, vcc')
    for u in range(4):
        p(f'buffer_load_ushort v{zr+u}, v{vz+u}, s[{rWR}:{rWR+3}], 0 offen')
        p(f'buffer_load_ushort v{zi+u}, v{vz+u}, s[{rWI}:{rWI+3}], 0 offen')
    srd(p, rXF, sWS, 4 * MB, WS_XF); srd(p, rWT, sWS, 4 * MB, WS_WT)
    vj, vh = al(), al()
    p(f'v_and_b32 v{vj}, 31, v{vL}'); p(f'v_lshrrev_b32 v{vh}, 5, v{vL}')
    tm = al(32)
    B1r, B1i = al(8), al(8)
    p(f'v_lshlrev_b32 v{t0}, 3, v{vh}')
    for sg in range(2):
        outs = [(tm + 8 + 2 * i, tm + 9 + 2 * i) for i in range(8)]
        angle_list(p, t0, vj, [16 * sg + i for i in range(8)], 32, outs, tm, 31)
        for i in range(4):
            p(f'v_cvt_pk_bf16_f32 v{B1r+4*sg+i}, v{outs[2*i][0]}, v{outs[2*i+1][0]}')
            p(f'v_cvt_pk_bf16_f32 v{B1i+4*sg+i}, -v{outs[2*i][1]}, -v{outs[2*i+1][1]}')
    twc, tws = al(16), al(16)
    p(f'v_cmp_eq_u32 vcc, 0, v{vj}'); p(f'v_mov_b32 v{t1}, 0x200'); p(f'v_cndmask_b32 v{t1}, v{vj}, v{t1}, vcc')
    p(f'v_lshlrev_b32 v{t0}, 2, v{vh}')
    angle_list(p, t0, t1, [8 * (i // 4) + i % 4 for i in range(16)], 1024, [(twc + i, tws + i) for i in range(16)], tm, 1023)
    A3 = al(16)
    p(f'v_lshrrev_b32 v{t1}, 1, v{vj}'); p(f'v_and_b32 v{t2}, 1, v{vj}'); p(f'v_lshlrev_b32 v{t2}, 3, v{t2}')
    for i in range(16):
        t = tm + (i % 4) * 3
        p(f'v_add_u32 v{t}, {8*(i//4) + i%4}, v{t0}'); p(f'v_mad_u32_u24 v{t}, v{t}, v{t1}, v{t2}'); p(f'v_and_b32 v{t}, 31, v{t}')
        sincos(p, t, 32, t + 1, t + 2, t)
        p(f'v_cvt_pk_bf16_f32 v{A3+i}, v{t+1}, v{t+2}')
    vhalf = al(); p(f'v_cmp_eq_u32 vcc, 0, v{vL}'); p(f'v_cndmask_b32 v{vhalf}, 1.0, 0.5, vcc')
    vlw, vlt, vlo, vlr = al(), al(), al(), al()
    p(f's_lshl_b32 s{sT}, s{sWave}, 12'); p(f's_add_u32 s{sT}, s{sT}, 16384')
    p(f'v_lshlrev_b32 v{vlw}, 4, v{vL}'); p(f'v_add_u32 v{vlw}, s{sT}, v{vlw}')
    p(f'v_lshlrev_b32 v{vlt}, 9, v{vh}'); p(f'v_bfe_u32 v{t0}, v{vL}, 2, 2'); p(f'v_lshl_add_u32 v{vlt}, v{t0}, 6, v{vlt}')
    p(f'v_bfe_u32 v{t0}, v{vL}, 4, 1'); p(f'v_lshl_add_u32 v{vlt}, v{t0}, 5, v{vlt}')
    p(f'v_and_b32 v{t0}, 3, v{vL}'); p(f'v_lshl_add_u32 v{vlt}, v{t0}, 3, v{vlt}'); p(f'v_add_u32 v{vlt}, s{sT}, v{vlt}')
    p(f'v_lshlrev_b32 v{vlo}, 5, v{vj}'); p(f'v_lshl_add_u32 v{vlo}, v{vh}, 11, v{vlo}'); p(f's_lshl_b32 s{sT}, s{sWave}, 3'); p(f'v_add_u32 v{vlo}, s{sT}, v{vlo}')
    p(f'v_lshlrev_b32 v{vlr}, 4, v{vT}')
    vgo, vwo = al(), al()
    p(f'v_lshrrev_b32 v{t0}, 3, v{vT}'); p(f'v_lshlrev_b32 v{t0}, 15, v{t0}'); p(f'v_and_b32 v{t1}, 7, v{vT}'); p(f'v_lshl_add_u32 v{t0}, v{t1}, 4, v{t0}')
    p(f's_lshl_b32 s{sT}, s2, 7'); p(f'v_add_u32 v{vgo}, s{sT}, v{t0}')
    p(f'v_lshrrev_b32 v{t0}, 1, v{vT}'); p(f'v_lshlrev_b32 v{t0}, 15, v{t0}'); p(f'v_and_b32 v{t1}, 1, v{vT}'); p(f'v_lshl_add_u32 v{t0}, v{t1}, 4, v{t0}')
    p(f'v_add_u32 v{vwo}, s{sT}, v{t0}')
    pr.stamp(p)
    for r in range(2):
        for i in range(8):
            p(f'v_lshlrev_b32 v{X[r]+2*i}, 16, v{raw+8*r+i}'); p(f'v_and_b32 v{X[r]+2*i+1}, 0xffff0000, v{raw+8*r+i}')
    pr.stamp(p)
    sm, sq = al(4), al(4)
    layernorm2(p, X, sm, sq, sS)
    for r in range(2):
        for i in range(8): p(f'v_cvt_pk_bf16_f32 v{raw+8*r+i}, v{X[r]+2*i}, v{X[r]+2*i+1}')
        for i in range(2): p(f'ds_write_b128 v{vlw}, {v(raw+8*r+4*i,4)} offset:{2048*r+1024*i}')
    p.wait_all(vm=False)
    for r in range(2):
        for sg in range(2):
            for h in range(2): p(f'ds_read_b64_tr_b16 {v(raw+8*r+4*sg+2*h,2)}, v{vlt} offset:{2048*r+1024*sg+256*h}')
    pr.stamp(p)
    Dr, Di = X, [al(16), al(16)]
    for r in range(2):
        for sg in range(2):
            p(f'{M32} {v(Dr[r],16)}, {v(raw+8*r+4*sg,4)}, {v(B1r+4*sg,4)}, {v(Dr[r],16) if sg else 0}')
            p(f'{M32} {v(Di[r],16)}, {v(raw+8*r+4*sg,4)}, {v(B1i+4*sg,4)}, {v(Di[r],16) if sg else 0}')
    wo = al(16)
    p(f's_mov_b32 s{sT}, 0x05040100'); p(f's_mov_b32 s{sT2}, 0x07060302')
    for u in range(4):
        for c in range(4):
            p(f'v_perm_b32 v{wo+4*c+u}, v{wi+2*u+c//2}, v{wr+2*u+c//2}, s{sT2 if c%2 else sT}')
        p(f'v_xor_b32 v{zi+u}, 0x8000, v{zi+u}'); p(f'v_lshl_or_b32 v{zr+u}, v{zi+u}, 16, v{zr+u}')
        p(f'v_bfi_b32 v{wo+u}, v{vsp}, v{zr+u}, v{wo+u}')
    for c in range(4): p(f'buffer_store_dwordx4 {v(wo+4*c,4)}, v{vwo}, s[{rWT}:{rWT+3}], 0 offen offset:{32*c}{st}')
    P = [tm + 16, wr]
    for r in range(2):
        cmul_tw(p, Dr[r], Di[r], twc, tws, tm, 16)
        for i in range(16): p(f'v_cvt_pk_bf16_f32 v{P[r]+i}, v{Dr[r]+i}, v{Di[r]+i}')
        for q in range(4): p(f'{M32} {v(Dr[r],16)}, {v(A3+4*q,4)}, {v(P[r]+4*q,4)}, {v(Dr[r],16) if q else 0}')
    O = Di[0]
    for r in range(2):
        p(f'v_mul_f32 v{Dr[r]}, v{vhalf}, v{Dr[r]}'); p(f'v_mul_f32 v{Dr[r]+1}, v{vhalf}, v{Dr[r]+1}')
        for i in range(8): p(f'v_cvt_pk_bf16_f32 v{O+2*i+r}, v{Dr[r]+2*i}, v{Dr[r]+2*i+1}')
    for i in range(8): p(f'ds_write_b64 v{vlo}, {v(O+2*i,2)} offset:{(4*(i//2) + i%2)*1024}')
    p.wait_all(vm=False); p('s_barrier')
    pr.stamp(p)
    for i in range(4): p(f'ds_read_b128 {v(P[0]+4*i,4)}, v{vlr} offset:{4096*i}')
    p(f's_mov_b32 s{sT}, 0')
    for i in range(4):
        p(f'buffer_store_dwordx4 {v(P[0]+4*i,4)}, v{vgo}, s[{rXF}:{rXF+3}], s{sT} offen{st}')
        if i < 3: p(f's_add_u32 s{sT}, s{sT}, {32*32768}')
    return tail(p, name, pr, 32768, al.n)

def gen_k2(name, prof=False, st='', colsum=True):
    p = Prog(); pr = Prof(prof); al = Alloc(1)
    sWS, sW3 = 6, 4
    rXF, rWT, rG, rW3, rCS = 12, 16, 20, 24, 28
    sWave, sT, sT2, sPP = 32, 33, 34, 35
    head(p, name, pr, [(sWS, 80), (sW3, 48)])
    vL = al(); t0, t1, t2, t3 = al(), al(), al(), al()
    p(f'v_and_b32 v{vL}, 63, v0')
    vj, vg = al(), al()
    p(f'v_and_b32 v{vj}, 15, v{vL}'); p(f'v_lshrrev_b32 v{vg}, 4, v{vL}')
    p(f's_lshr_b32 s{sT}, s2, 4'); p(f's_lshl_b32 s{sT}, s{sT}, 3'); p(f's_and_b32 s{sT2}, s2, 7'); p(f's_add_u32 s{sT}, s{sT}, s{sT2}')
    p(f's_bfe_u32 s{sT2}, s2, 0x10003'); p(f's_lshl_b32 s{sPP}, s{sT}, 1'); p(f's_add_u32 s{sPP}, s{sPP}, s{sT2}')
    p(f's_lshl_b32 s{sT}, s{sT}, 15'); p(f's_lshl_b32 s{sT2}, s{sT2}, 6'); p(f's_add_u32 s{sT}, s{sT}, s{sT2}')
    p(f'v_lshrrev_b32 v{t0}, 1, v{vg}'); p(f'v_and_b32 v{t1}, 1, v{vg}'); p(f'v_lshlrev_b32 v{t1}, 4, v{t1}')
    vxf, vwt = al(), al()
    p(f'v_lshlrev_b32 v{t2}, 12, v{t0}'); p(f'v_lshl_add_u32 v{t2}, v{vj}, 7, v{t2}'); p(f'v_add_u32 v{t2}, v{t2}, v{t1}')
    p(f's_lshl_b32 s{sT2}, s{sWave}, 13'); p(f's_add_u32 s{sT2}, s{sT2}, s{sT}'); p(f'v_add_u32 v{vxf}, s{sT2}, v{t2}')
    p(f'v_lshlrev_b32 v{t2}, 13, v{t0}'); p(f'v_lshl_add_u32 v{t2}, v{vj}, 7, v{t2}'); p(f'v_add_u32 v{t2}, v{t2}, v{t1}')
    p(f's_lshl_b32 s{sT2}, s{sWave}, 11'); p(f's_add_u32 s{sT2}, s{sT2}, s{sT}'); p(f'v_add_u32 v{vwt}, s{sT2}, v{t2}')
    vwt1 = al(); p(f'v_add_u32 v{vwt1}, 16384, v{vwt}')
    vxf1 = al(); p(f'v_add_u32 v{vxf1}, {32 - 1024}, v{vxf}')
    p.wait_all()
    srd(p, rXF, sWS, 4 * MB, WS_XF); srd(p, rWT, sWS, 4 * MB, WS_WT)
    p(f's_lshl_b32 s{sT}, s{sWave}, 10')
    for mt in range(2):
        p(f's_add_u32 m0, s{sT}, {mt*8192}')
        p(f's_mov_b32 s{sT2}, {mt*2048}')
        p(f'buffer_load_dwordx4 v{vxf}, s[{rXF}:{rXF+3}], s{sT2} offen lds', tok='x')
        p(f's_add_u32 m0, s{sT}, {mt*8192 + 4096 - 1024}')
        p(f'buffer_load_dwordx4 v{vxf1}, s[{rXF}:{rXF+3}], s{sT2} offen offset:1024 lds', tok='x')
    WT = al(16)
    for col in range(2):
        for mt2 in range(2): p(f'buffer_load_dwordx4 {v(WT+8*col+4*mt2,4)}, v{vwt1 if mt2 else vwt}, s[{rWT}:{rWT+3}], 0 offen offset:{32*col}')
    if colsum:
        srd(p, rW3, sW3, 1024 * 7168); srd(p, rCS, sWS, 14336, WS_CS)
        vc = al(); C = al(32)
        p(f's_and_b32 s{sT}, s2, 7'); p(f's_mul_i32 s{sT}, s{sT}, 28'); p(f's_lshr_b32 s{sT2}, s2, 3'); p(f's_add_u32 s36, s{sT}, s{sT2}')
        p(f's_cmp_lt_u32 s{sT2}, 28'); p(f's_cselect_b32 s{rW3+2}, s{rW3+2}, 0'); p(f's_cselect_b32 s{rCS+2}, s{rCS+2}, 0')
        p(f's_lshl_b32 s{sT}, s36, 5')
        p(f'v_lshrrev_b32 v{t0}, 1, v0'); p(f'v_mul_u32_u24 v{t0}, 7168, v{t0}'); p(f'v_and_b32 v{t1}, 1, v0'); p(f'v_lshl_add_u32 v{t0}, v{t1}, 4, v{t0}')
        p(f'v_add_u32 v{vc}, s{sT}, v{t0}')
        p(f's_mov_b32 s{sT}, 0')
        for i in range(8):
            p(f'buffer_load_dwordx4 {v(C+4*i,4)}, v{vc}, s[{rW3}:{rW3+3}], s{sT} offen')
            if i < 7: p(f's_add_u32 s{sT}, s{sT}, {128*7168}')
    srd(p, rG, sWS, 4 * MB, WS_G)
    tm = al(16)
    vk = al()
    p(f's_lshl_b32 s{sT}, s{sWave}, 4'); p(f'v_add_u32 v{vk}, s{sT}, v{vj}')
    vg4 = al(); p(f'v_lshlrev_b32 v{vg4}, 2, v{vg}')
    def const_frags(Fr, Fi, step, offs, den):
        for i, o in enumerate(offs):
            t = tm + (i % 4) * 3
            p(f'v_add_u32 v{t}, {o}, v{vg4}'); p(f'v_mul_u32_u24 v{t}, v{t}, v{step}'); p(f'v_and_b32 v{t}, {den-1}, v{t}')
            sincos(p, t, den, t + 1, t + 2, t)
            p(f'v_cvt_pk_bf16_f32 v{Fr+i}, v{t+1}, v{t+2}'); p(f'v_cvt_pk_bf16_f32 v{Fi+i}, -v{t+2}, v{t+1}')
    F1r, F1i = al(16), al(16)
    const_frags(F1r, F1i, vk, [16 * (i // 4) + i % 4 for i in range(16)], 64)
    T1c, T1s = al(8), al(8)
    angle_list(p, vg4, vk, [16 * (i // 4) + i % 4 for i in range(8)], 2048, [(T1c + i, T1s + i) for i in range(8)], tm, 2047)
    F2r, F2i = al(16), al(16)
    const_frags(F2r, F2i, vj, [16 * (i // 4) + i % 4 for i in range(8)], 32)
    p(f'v_add_u32 v{t0}, 16, v{vj}')
    const_frags(F2r + 8, F2i + 8, t0, [16 * (i // 4) + i % 4 for i in range(8)], 32)
    T2c, T2s = al(8), al(8)
    p(f'v_add_u32 v{t1}, s{sT}, v{vg4}')
    angle_list(p, t1, vj, [0, 1, 2, 3], 2048, [(T2c + i, T2s + i) for i in range(4)], tm, 2047)
    angle_list(p, t1, t0, [0, 1, 2, 3], 2048, [(T2c + 4 + i, T2s + 4 + i) for i in range(4)], tm, 2047)
    vlr, vlw, vgo = al(), al(), al()
    p(f'v_lshlrev_b32 v{vlr}, 4, v{vL}')
    p(f's_lshl_b32 s{sT}, s{sWave}, 10'); p(f's_add_u32 s{sT}, s{sT}, 16384'); p(f'v_add_u32 v{vlw}, s{sT}, v{vlr}')
    p(f's_lshl_b32 s{sT}, s{sPP}, 14'); p(f'v_lshlrev_b32 v{vgo}, 8, v{vk}'); p(f'v_add_u32 v{vgo}, s{sT}, v{vgo}')
    p(f'v_lshrrev_b32 v{t0}, 1, v{vg}'); p(f'v_lshl_add_u32 v{vgo}, v{t0}, 6, v{vgo}'); p(f'v_and_b32 v{t0}, 1, v{vg}'); p(f'v_lshl_add_u32 v{vgo}, v{t0}, 4, v{vgo}')
    pr.stamp(p)
    p.wait_tok('x'); p('s_barrier')
    pr.stamp(p)
    A = 0; A2 = 32
    Dr, Di = [al(8), al(8)], [al(8), al(8)]
    P = [al(8), al(8)]
    frag = lambda base, col, mt, sg: base + ((mt * 2 + col) * 4 + sg) * 1024
    def big_step(base, col, Aregs):
        for mt in range(2):
            for sg in range(4): p(f'ds_read_b128 {a(Aregs+16*mt+4*sg,4)}, v{vlr} offset:{frag(base, col, mt, sg)}')
        for sg in range(4):
            for mt in range(2):
                for D, F in ((Dr, F1r), (Di, F1i)):
                    d = D[col] + 4 * mt
                    p(f'{M16} {v(d,4)}, {a(Aregs+16*mt+4*sg,4)}, {v(F+4*sg,4)}, {v(d,4) if sg else 0}')
    def small_step(col, data_is_b):
        for sg in range(2):
            for mt in range(2):
                for D, F in ((Dr, F2r), (Di, F2i)):
                    d = D[col] + 4 * mt; f = v(F + 8 * mt + 4 * sg, 4); x = v(P[col] + 4 * sg, 4)
                    p(f'{M16} {v(d,4)}, {f if data_is_b else x}, {x if data_is_b else f}, {v(d,4) if sg else 0}')
    def pack(col, neg=False):
        for i in range(8): p(f'v_cvt_pk_bf16_f32 v{P[col]+i}, v{Dr[col]+i}, {"-" if neg else ""}v{Di[col]+i}')
    big_step(0, 0, A); big_step(0, 1, A2)
    for col in range(2):
        cmul_tw(p, Dr[col], Di[col], T1c, T1s, tm, 8); pack(col); small_step(col, True)
    Wc, Ws = al(8), al(8)
    for col in range(2):
        for i in range(8):
            p(f'v_lshlrev_b32 v{Wc+i}, 16, v{WT+8*col+i}'); p(f'v_and_b32 v{Ws+i}, 0xffff0000, v{WT+8*col+i}')
        for i in range(0, 8, 2): p(f'v_pk_mul_f32 {v(tm+i,2)}, {v(Di[col]+i,2)}, {v(Ws+i,2)}')
        for i in range(0, 8, 2): p(f'v_pk_mul_f32 {v(Di[col]+i,2)}, {v(Di[col]+i,2)}, {v(Wc+i,2)}')
        for i in range(0, 8, 2): p(f'v_pk_fma_f32 {v(Di[col]+i,2)}, {v(Dr[col]+i,2)}, {v(Ws+i,2)}, {v(Di[col]+i,2)}')
        for i in range(0, 8, 2): p(f'v_pk_fma_f32 {v(Dr[col]+i,2)}, {v(Dr[col]+i,2)}, {v(Wc+i,2)}, {v(tm+i,2)} neg_lo:[0,0,1] neg_hi:[0,0,1]')
        pack(col, neg=True); small_step(col, False)
    for col in range(2):
        cmul_tw(p, Dr[col], Di[col], T2c, T2s, tm, 8); pack(col)
        for nt in range(2): p(f'ds_write_b128 v{vlw}, {v(P[col]+4*nt,4)} offset:{frag(0, col, nt, 0)}')
    if colsum:
        S = Wc
        for i in range(8):
            for d in range(4):
                if i == 0:
                    p(f'v_lshlrev_b32 v{S+2*d}, 16, v{C+d}'); p(f'v_and_b32 v{S+2*d+1}, 0xffff0000, v{C+d}')
                else:
                    p(f'v_lshlrev_b32 v{tm+2*d}, 16, v{C+4*i+d}'); p(f'v_and_b32 v{tm+2*d+1}, 0xffff0000, v{C+4*i+d}')
            if i:
                for d in range(4): p(f'v_pk_add_f32 {v(S+2*d,2)}, {v(S+2*d,2)}, {v(tm+2*d,2)}')
        for m in ['quad_perm:[2,3,0,1]', 'row_ror:4', 'row_ror:8']:
            for d in range(8): p(f'v_add_f32_dpp v{S+d}, v{S+d}, v{S+d} {m} row_mask:0xf bank_mask:0xf')
        for sw in ('v_permlane16_swap_b32', 'v_permlane32_swap_b32'):
            for d in range(8): p(f'v_mov_b32 v{tm+d}, v{S+d}')
            for d in range(8): p(f'{sw} v{S+d}, v{tm+d}')
            for d in range(8): p(f'v_add_f32 v{S+d}, v{S+d}, v{tm+d}')
        p(f'v_lshlrev_b32 v{t0}, 5, v{vL}'); p(f's_lshl_b32 s{sT}, s{sWave}, 6'); p(f's_add_u32 s{sT}, s{sT}, 32768'); p(f'v_add_u32 v{t0}, s{sT}, v{t0}')
        p('s_mov_b64 exec, 3')
        p(f'ds_write_b128 v{t0}, {v(S,4)}'); p(f'ds_write_b128 v{t0}, {v(S+4,4)} offset:16')
        p('s_mov_b64 exec, -1')
    p.wait_all(vm=False); p('s_barrier')
    pr.stamp(p)
    big_step(16384, 0, A); big_step(16384, 1, A2)
    if colsum:
        p(f'v_and_b32 v{t0}, 15, v{vL}'); p(f'v_lshlrev_b32 v{t0}, 2, v{t0}'); p(f's_lshl_b32 s{sT}, s36, 6'); p(f'v_add_u32 v{t1}, s{sT}, v{t0}')
        for i in range(4): p(f'ds_read_b32 v{tm+i}, v{t0} offset:{32768+64*i}')
        p(f'v_add_f32 v{tm}, v{tm}, v{tm+1}'); p(f'v_add_f32 v{tm+2}, v{tm+2}, v{tm+3}'); p(f'v_add_f32 v{tm}, v{tm}, v{tm+2}')
        p(f'buffer_store_dword v{tm}, v{t1}, s[{rCS}:{rCS+3}], 0 offen{st}')
    for col in range(2):
        pack(col)
        for nt in range(2): p(f'buffer_store_dwordx4 {v(P[col]+4*nt,4)}, v{vgo}, s[{rG}:{rG+3}], 0 offen offset:{128*nt+32*col}{st}')
    return tail(p, name, pr, 32768 + 256, al.n, 64)

def gen_k3(name, prof=False, st=''):
    p = Prog(); pr = Prof(prof); al = Alloc(1)
    sX, sWS = 4, 6
    rX, rG, rH, rXP, rS2 = 12, 16, 20, 24, 28
    sWave, sT, sT2, sRow, sS = 32, 33, 34, 35, 36
    head(p, name, pr, [(sX, 0), (sWS, 80)])
    vL = al(); t0, t1, t2, t3 = al(), al(), al(), al()
    p(f'v_and_b32 v{vL}, 63, v0')
    vj, vh = al(), al()
    p(f'v_and_b32 v{vj}, 31, v{vL}'); p(f'v_lshrrev_b32 v{vh}, 5, v{vL}')
    p(f's_and_b32 s{sT}, s2, 7'); p(f's_lshl_b32 s{sT}, s{sT}, 8'); p(f's_lshr_b32 s{sT2}, s2, 3'); p(f's_lshl_b32 s{sT2}, s{sT2}, 3'); p(f's_add_u32 s{sRow}, s{sT}, s{sT2}')
    vg_ = al()
    p(f'v_lshrrev_b32 v{t0}, 2, v{vL}'); p(f'v_lshlrev_b32 v{t0}, 14, v{t0}'); p(f'v_and_b32 v{t1}, 3, v{vL}'); p(f'v_lshl_add_u32 v{t0}, v{t1}, 4, v{t0}')
    p(f's_lshl_b32 s{sT}, s{sRow}, 3'); p(f's_lshl_b32 s{sT2}, s{sWave}, 20'); p(f's_add_u32 s{sT}, s{sT}, s{sT2}'); p(f'v_add_u32 v{vg_}, s{sT}, v{t0}')
    vx = al()
    p(f's_lshl_b32 s{sT}, s{sWave}, 1'); p(f's_add_u32 s{sRow}, s{sRow}, s{sT}')
    p(f's_lshl_b32 s{sT}, s{sRow}, 11'); p(f'v_lshlrev_b32 v{vx}, 6, v{vj}'); p(f'v_lshl_add_u32 v{vx}, v{vh}, 3, v{vx}'); p(f'v_add_u32 v{vx}, s{sT}, v{vx}')
    p.wait_all()
    srd(p, rG, sWS, 4 * MB, WS_G); srd(p, rX, sX, 4 * MB)
    p(f's_lshl_b32 s{sT}, s{sWave}, 12'); p(f's_mov_b32 m0, s{sT}'); p(f's_mov_b32 s{sT2}, 0')
    for i in range(4):
        p(f'buffer_load_dwordx4 v{vg_}, s[{rG}:{rG+3}], s{sT2} offen offset:{1024*i} lds', tok='g')
        if i < 3: p(f's_add_u32 s{sT2}, s{sT2}, {16*16384 - 1024}')
    xr = al(16)
    for r in range(2):
        for q in range(4): p(f'buffer_load_dwordx2 {v(xr+8*r+2*q,2)}, v{vx}, s[{rX}:{rX+3}], 0 offen offset:{2048*r+16*q}')
    srd(p, rH, sWS, 4 * MB, WS_H); srd(p, rXP, sWS, 4 * MB, WS_XP); srd(p, rS2, sWS, 8192, WS_S2)
    tm = al(32)
    vh4 = al(); p(f'v_lshlrev_b32 v{vh4}, 2, v{vh}')
    BAr, BAi = al(8), al(8)
    for i in range(8):
        t = tm + (i % 4) * 3
        p(f'v_add_u32 v{t}, {8*(i//4) + i%4}, v{vh4}'); p(f'v_mul_u32_u24 v{t}, v{t}, v{vj}'); p(f'v_and_b32 v{t}, 31, v{t}')
        sincos(p, t, 32, t + 1, t + 2, t)
        p(f'v_cvt_pk_bf16_f32 v{BAr+i}, v{t+1}, v{t+2}'); p(f'v_cvt_pk_bf16_f32 v{BAi+i}, -v{t+2}, v{t+1}')
    twc, tws = al(16), al(16)
    angle_list(p, vh4, vj, [8 * (i // 4) + i % 4 for i in range(16)], 1024, [(twc + i, tws + i) for i in range(16)], tm, 1023)
    p(f'v_and_b32 v{t0}, 1, v{vj}'); p(f'v_cmp_eq_u32 vcc, 1, v{t0}'); p(f'v_cndmask_b32 v{t0}, 1.0, -1.0, vcc')
    p(f'v_cmp_eq_u32 vcc, 0, v{vh}'); p(f'v_cndmask_b32 v{twc}, v{twc}, v{t0}, vcc')
    BC = al(16)
    for i in range(16):
        t = tm + (i % 4) * 3
        p(f'v_add_u32 v{t}, {8*(i//4) + i%4}, v{vh4}'); p(f'v_mul_u32_u24 v{t}, v{t}, v{vj}'); p(f'v_and_b32 v{t}, 31, v{t}')
        sincos(p, t, 32, t + 1, t + 2, t)
        p(f'v_cvt_pk_bf16_f32 v{BC+i}, v{t+1}, v{t+2}')
    vlr, vo = al(), al()
    p(f'v_lshlrev_b32 v{vlr}, 5, v{vj}'); p(f'v_lshl_add_u32 v{vlr}, v{vh}, 12, v{vlr}'); p(f's_lshl_b32 s{sT}, s{sWave}, 3'); p(f'v_add_u32 v{vlr}, s{sT}, v{vlr}')
    p(f's_lshr_b32 s{sT}, s{sRow}, 4'); p(f's_lshl_b32 s{sT}, s{sT}, 15'); p(f's_and_b32 s{sT2}, s{sRow}, 15'); p(f's_lshl_b32 s{sT2}, s{sT2}, 4'); p(f's_add_u32 s{sT}, s{sT}, s{sT2}')
    p(f'v_lshlrev_b32 v{vo}, 10, v{vj}'); p(f'v_lshl_add_u32 v{vo}, v{vh}, 8, v{vo}'); p(f'v_add_u32 v{vo}, s{sT}, v{vo}')
    pr.stamp(p)
    p.wait_tok('g'); p('s_barrier')
    pr.stamp(p)
    R_ = al(16); A = [al(8), al(8)]
    for i in range(8): p(f'ds_read_b64 {v(R_+2*i,2)}, v{vlr} offset:{(8*(i//4) + i%4)*1024}')
    for i in range(8):
        for r in range(2): p(f'v_mov_b32 v{A[r]+i}, v{R_+2*i+r}')
    Dr, Di = [al(16), al(16)], [al(16), al(16)]
    for r in range(2):
        for sg in range(2):
            p(f'{M32} {v(Dr[r],16)}, {v(A[r]+4*sg,4)}, {v(BAr+4*sg,4)}, {v(Dr[r],16) if sg else 0}')
            p(f'{M32} {v(Di[r],16)}, {v(A[r]+4*sg,4)}, {v(BAi+4*sg,4)}, {v(Di[r],16) if sg else 0}')
    P = [R_, al(16)]
    for r in range(2):
        cmul_tw(p, Dr[r], Di[r], twc, tws, tm, 16)
        for i in range(16): p(f'v_cvt_pk_bf16_f32 v{P[r]+i}, v{Dr[r]+i}, v{Di[r]+i}')
        for q in range(4): p(f'{M32} {v(Dr[r],16)}, {v(P[r]+4*q,4)}, {v(BC+4*q,4)}, {v(Dr[r],16) if q else 0}')
    pr.stamp(p)
    X = Di
    p(f's_mov_b32 s44, {fhex(2.0**-20)}')
    for r in range(2):
        for i in range(8):
            p(f'v_lshlrev_b32 v{X[r]+2*i}, 16, v{xr+8*r+i}'); p(f'v_and_b32 v{X[r]+2*i+1}, 0xffff0000, v{xr+8*r+i}')
    for r in range(2):
        for i in range(0, 16, 2): p(f'v_pk_fma_f32 {v(X[r]+i,2)}, {v(Dr[r]+i,2)}, s[44:45], {v(X[r]+i,2)} op_sel_hi:[1,0,1]')
    def af_store(r, srdreg, tmp):
        for qq in range(2):
            for i in range(4):
                src = X[r] + 4 * (qq + 2 * (i // 2)) + 2 * (i % 2)
                p(f'v_cvt_pk_bf16_f32 v{tmp+4*qq+i}, v{src}, v{src+1}')
            p(f'buffer_store_dwordx4 {v(tmp+4*qq,4)}, v{vo}, s[{srdreg}:{srdreg+3}], 0 offen offset:{512*qq+16*r}{st}')
    for r in range(2): af_store(r, rH, tm + 8 * r)
    sm, sq = al(4), al(4)
    layernorm2(p, X, sm, sq, sS)
    for r in range(2): af_store(r, rXP, tm + 16 + 8 * r)
    for r in range(2):
        p(f'v_mul_f32 v{sm+2*r}, v{sm+2*r}, v{sm+2*r}'); p(f'v_mul_f32 v{sm+2*r}, v{sm+2*r}, v{sq+2*r}')
        p(f'v_add_f32 v{sm+2*r}, {fhex(1e-5)}, v{sm+2*r}'); p(f'v_rsq_f32 v{sm+2*r}, v{sm+2*r}')
    p(f'v_mov_b32 v{sm+1}, v{sm+2}')
    p(f's_lshl_b32 s{sT}, s{sRow}, 2'); p(f'v_mov_b32 v{t0}, s{sT}')
    p('s_mov_b64 exec, 1')
    p(f'buffer_store_dwordx2 {v(sm,2)}, v{t0}, s[{rS2}:{rS2+3}], 0 offen{st}')
    p('s_mov_b64 exec, -1')
    return tail(p, name, pr, 16384, al.n)
```

```python
from kern import *
from layout import *
import struct
def f2u(x): return struct.unpack('<I', struct.pack('<f', x))[0]
def fhex(x): return '0x%08x' % f2u(x)
C0 = -2.0 * 1.4426950408889634 * 0.7978845608028654
C1 = C0 * 0.044715
flat = lambda gs: [x for g in gs for x in g]

class Gemm:
    def __init__(self, which, pk=True, abl='', prof=False, **kw):
        self.prof = Prof(prof)
        self.which = which; self.pk = pk; self.abl = abl
        cfg = {
            'g1': dict(K=1024, N=1024, MT=2, NT=4, wptr=32, a_off=WS_XP, D=8, R=6, PF=2, SK=2, map='row'),
            'g2': dict(K=1024, N=1024, MT=2, NT=4, wptr=40, a_off=WS_H1, D=8, R=6, PF=2, SK=2, map='row'),
            'g3': dict(K=1024, N=3584, MT=4, NT=7, wptr=48, a_off=WS_X1, D=4, R=5, PF=1, SK=2, map='2d'),
            'g4': dict(K=3584, N=1024, MT=2, NT=4, wptr=56, a_off=WS_GG, D=7, R=7, PF=2, SK=2, map='2d', body=28),
        }[which]
        cfg.update(dict(D0=2, B0=2, ramp=2, st='', cap=1, body=cfg.get('body')))
        cfg.update(kw)
        self.__dict__.update(cfg)
        self.KS = self.K // 32
        self.NS = self.KS // self.SK
        self.rowb = self.NT * 32
        self.stage = 32 * self.SK * self.rowb
        self.lds = self.R * self.stage
        self.ldb = self.N * 2

    def gen(self, name):
        p = Prog(); self.p = p
        MT, NT, KS, D, R, PF, SK, NS = self.MT, self.NT, self.KS, self.D, self.R, self.PF, self.SK, self.NS
        ldb, rowb, stage = self.ldb, self.rowb, self.stage
        w = self.which
        sW, sWS, sOUT = 4, 6, 8
        sA, sB, sC, sE, sF = 12, 16, 20, 24, 28
        sWave, sMT0, sCB, sAo, sBo, sWl, sT, sT2, sOdd, sCnt = 32, 33, 34, 35, 36, 37, 38, 39, 40, 41
        sC0, sC1, sOne = 44, 46, 48
        vLane = 0
        vA = 1
        vB = vA + MT
        cpr = rowb // 16
        cpw = 8 * SK * cpr
        nB = -(-cpw // 64); lastl = cpw - 64 * (nB - 1)
        vTr = vB + nB
        if NT == 4: nbase = -(-self.lds // 65536); nTr = 4 * nbase
        else: spb = 65536 // stage; nbase = -(-R // spb); nTr = nbase
        nxt = vTr + nTr; nxt += nxt & 1
        vW = nxt; nxt += PF * NT * 4
        vAcc = nxt; nxt += MT * NT * 4
        vX = nxt
        self.vX = vX
        lab = f'L_{name}_end'
        p(f's_cmp_ge_u32 s2, 256'); p(f's_cbranch_scc1 {lab}')
        self.prof.start(p)
        p(f's_load_dwordx2 s[{sW}:{sW+1}], s[0:1], {self.wptr}')
        p(f's_load_dwordx2 s[{sWS}:{sWS+1}], s[0:1], 80')
        if w == 'g4': p(f's_load_dwordx2 s[{sOUT}:{sOUT+1}], s[0:1], 64')
        p(f'v_lshrrev_b32 v1, 6, v0'); p(f'v_readfirstlane_b32 s{sWave}, v1')
        p(f'v_and_b32 v{vLane}, 63, v0')
        p(f's_and_b32 s{sT}, s2, 7'); p(f's_lshr_b32 s{sT2}, s2, 3')
        if NT == 4:
            if self.map == 'row':
                p(f's_and_b32 s{sMT0}, s{sT2}, 1'); p(f's_lshl_b32 s{sT}, s{sT}, 1'); p(f's_add_u32 s{sMT0}, s{sMT0}, s{sT}')
                p(f's_lshr_b32 s{sCB}, s{sT2}, 1')
            else:
                p(f's_and_b32 s{sMT0}, s{sT2}, 3'); p(f's_lshr_b32 s{sCB}, s{sT}, 1'); p(f's_lshl_b32 s{sCB}, s{sCB}, 2'); p(f's_add_u32 s{sMT0}, s{sMT0}, s{sCB}')
                p(f's_and_b32 s{sCB}, s{sT}, 1'); p(f's_lshl_b32 s{sCB}, s{sCB}, 3'); p(f's_lshr_b32 s{sT2}, s{sT2}, 2'); p(f's_add_u32 s{sCB}, s{sCB}, s{sT2}')
            p(f's_lshl_b32 s{sMT0}, s{sMT0}, 3'); p(f's_lshl_b32 s{sT}, s{sWave}, 1'); p(f's_add_u32 s{sMT0}, s{sMT0}, s{sT}')
        else:
            if self.map == 'row':
                p(f's_mov_b32 s{sMT0}, s{sT}'); p(f's_mov_b32 s{sCB}, s{sT2}')
            else:
                p(f's_and_b32 s{sMT0}, s{sT2}, 3'); p(f's_and_b32 s{sCB}, s{sT}, 4'); p(f's_add_u32 s{sMT0}, s{sMT0}, s{sCB}')
                p(f's_and_b32 s{sCB}, s{sT}, 3'); p(f's_lshl_b32 s{sCB}, s{sCB}, 3'); p(f's_lshr_b32 s{sT2}, s{sT2}, 2'); p(f's_add_u32 s{sCB}, s{sCB}, s{sT2}')
            p(f's_lshl_b32 s{sMT0}, s{sMT0}, 4'); p(f's_lshl_b32 s{sT}, s{sWave}, 2'); p(f's_add_u32 s{sMT0}, s{sMT0}, s{sT}')
            p(f's_and_b32 s{sOdd}, s{sCB}, 1')
        p(f's_mul_i32 s{sT}, s{sMT0}, {KS*1024}')
        p(f'v_lshlrev_b32 v{vA}, 4, v{vLane}'); p(f'v_add_u32 v{vA}, s{sT}, v{vA}')
        for j in range(1, MT): p(f'v_add_u32 v{vA+j}, {j*KS*1024}, v{vA}')
        t0, t1, t2, t3 = vAcc, vAcc + 1, vAcc + 2, vAcc + 3
        if NT == 4:
            p(f'v_lshrrev_b32 v{t0}, 3, v{vLane}')
            p(f'v_lshrrev_b32 v{t1}, 1, v{t0}'); p(f'v_and_b32 v{t2}, 7, v{vLane}')
            p(f'v_lshlrev_b32 v{t1}, 1, v{t1}'); p(f'v_xor_b32 v{t1}, v{t1}, v{t2}')
            p(f'v_lshlrev_b32 v{t1}, 4, v{t1}'); p(f'v_mul_u32_u24 v{t0}, {ldb}, v{t0}'); p(f'v_add_u32 v{t0}, v{t0}, v{t1}')
            p(f's_mul_i32 s{sT}, s{sWave}, {8*SK*ldb}'); p(f's_lshl_b32 s{sT2}, s{sCB}, 7'); p(f's_add_u32 s{sT}, s{sT}, s{sT2}')
            p(f'v_add_u32 v{vB}, s{sT}, v{t0}')
            for j in range(1, nB): p(f'v_add_u32 v{vB+j}, {j*8*ldb-(j%4)*1024}, v{vB}')
        else:
            p(f's_mul_i32 s{sT}, s{sWave}, {8*SK*ldb}'); p(f's_mul_i32 s{sT2}, s{sCB}, 224'); p(f's_add_u32 s{sT}, s{sT}, s{sT2}')
            p(f's_lshl_b32 s{sT2}, s{sOdd}, 1')
            for j in range(nB):
                p(f'v_add_u32 v{t0}, {64*j}, v{vLane}'); p(f'v_mul_u32_u24 v{t1}, 4682, v{t0}'); p(f'v_lshrrev_b32 v{t1}, 16, v{t1}')
                p(f'v_mul_u32_u24 v{t2}, 14, v{t1}'); p(f'v_sub_u32 v{t0}, v{t0}, v{t2}'); p(f'v_add_u32 v{t0}, s{sT2}, v{t0}')
                p(f'v_subrev_u32 v{t2}, 14, v{t0}'); p(f'v_min_u32 v{t0}, v{t0}, v{t2}')
                p(f'v_lshlrev_b32 v{t0}, 4, v{t0}'); p(f'v_mul_u32_u24 v{t1}, {ldb}, v{t1}'); p(f'v_add_u32 v{t0}, v{t0}, v{t1}')
                p(f'v_add_u32 v{vB+j}, s{sT}, v{t0}')
                if j % 4: p(f'v_subrev_u32 v{vB+j}, {(j % 4)*1024}, v{vB+j}')
        p(f's_mul_i32 s{sWl}, s{sWave}, {stage//4}')
        p(f's_mov_b32 s{sAo}, 0'); p(f's_mov_b32 s{sBo}, 0')
        p.wait_all()
        srd(p, sB, sW, self.K * ldb)
        srd(p, sA, sWS, 2048 * self.K * 2, self.a_off)

        def dma(st):
            slot = st % R; out = []
            for j in range(nB):
                grp = []
                if j % 4 == 0: grp.append(f's_add_u32 m0, s{sWl}, {slot*stage + j*1024}')
                off = f' offset:{(j%4)*1024}' if j % 4 else ''
                part = j == nB - 1 and lastl < 64
                if 'B' in self.abl and st >= R - 1: out.append(grp); continue
                if part: assert lastl >= 32; grp.append(f's_mov_b32 exec_hi, {hex((1 << (lastl - 32)) - 1)}')
                grp.append((f'buffer_load_dwordx4 v{vB+j}, s[{sB}:{sB+3}], s{sBo} offen{off} lds', dict(tok=('B', st))))
                if part: grp.append('s_mov_b32 exec_hi, -1')
                if j == nB - 1: grp.append(f's_add_u32 s{sBo}, s{sBo}, {32*SK*ldb}')
                out.append(grp)
            return out
        def aload(ks):
            slot = ks % D; out = []
            for j in range(MT):
                grp = []
                off = f' offset:{(ks%4)*1024}' if ks % 4 else ''
                if not ('A' in self.abl and ks >= D):
                    grp.append(f'buffer_load_dwordx4 {a((slot*MT+j)*4,4)}, v{vA+j}, s[{sA}:{sA+3}], s{sAo} offen{off}')
                if j == MT - 1 and ks % 4 == 3: grp.append(f's_add_u32 s{sAo}, s{sAo}, 4096')
                out.append(grp)
            return out
        def wread(ks, nt):
            st, kk = divmod(ks, SK); slot = st % R
            dst = vW + ((ks % PF) * NT + nt) * 4
            out = []
            for h in range(2):
                if NT == 4:
                    o = slot * stage + kk * 4096 + h * 2048; base = vTr + 4 * (o // 65536) + nt; o %= 65536
                else:
                    b, sl = divmod(slot, spb)
                    o = sl * stage + kk * 7168 + h * 3584 + nt * 32; base = vTr + b
                out.append([f'ds_read_b64_tr_b16 {v(dst+2*h,2)}, v{base} offset:{o}'])
            return out
        self.setup_early(p, locals())
        p.extend(flat(dma(0))); nb = 1; na = 0
        self.early_loads(p, locals())
        while na < self.D0 or nb < self.B0:
            if na < self.D0: p.extend(flat(aload(na))); na += 1
            if nb < self.B0 and (nb * SK <= na or na >= self.D0): p.extend(flat(dma(nb))); nb += 1
        t0, t1, t2, t3 = vAcc, vAcc + 1, vAcc + 2, vAcc + 3
        p(f'v_lshrrev_b32 v{t0}, 2, v{vLane}'); p(f'v_and_b32 v{t1}, 3, v{vLane}'); p(f'v_lshlrev_b32 v{t1}, 3, v{t1}')
        if NT == 4:
            p(f'v_lshrrev_b32 v{t2}, 1, v{t0}'); p(f'v_and_b32 v{t2}, 3, v{t2}')
            p(f'v_lshlrev_b32 v{t0}, 7, v{t0}'); p(f'v_add_u32 v{t0}, v{t0}, v{t1}')
            for nt in range(4):
                p(f'v_xor_b32 v{t3}, {nt}, v{t2}'); p(f'v_lshl_add_u32 v{vTr+nt}, v{t3}, 5, v{t0}')
                for b in range(1, nbase): p(f'v_add_u32 v{vTr+4*b+nt}, {b*65536}, v{vTr+nt}')
        else:
            p(f'v_mul_u32_u24 v{t0}, 224, v{t0}'); p(f'v_add_u32 v{vTr}, v{t0}, v{t1}')
            for b in range(1, nbase): p(f'v_add_u32 v{vTr+b}, {b*spb*stage}, v{vTr}')
        self.setup_epilogue(p, locals())
        self.early_work(p, locals())
        self.prof.stamp(p)
        p.wait_tok(('B', 0)); p('s_barrier')
        self.prof.stamp(p)
        for ks in range(PF):
            if ks and ks % SK == 0: p.wait_tok(('B', ks // SK)); p('s_barrier')
            for nt in range(NT): p.extend(flat(wread(ks, nt)))
        body = self.body
        ep_at = KS - min(D, 6)
        bfree = R
        for ks in range(KS):
            if body and ks % body == 0: p.mark(f'b{ks//body}')
            nk = ks + PF
            if nk < KS and nk % SK == 0:
                st = nk // SK
                assert st < nb, 'stage not issued before its barrier'
                p.wait_tok(('B', st)); p('s_barrier')
                bfree = ks // SK + R
            if ks == ep_at: self.epilogue_loads(p, locals())
            assert na > ks
            fill = []
            nmf = MT * NT
            lim_b = min(NS, bfree, (self.B0 * SK + self.ramp * (ks + 1)) // SK)
            while nb < lim_b:
                fill += [(0, g) for g in dma(nb)]; nb += 1
            lim_a = min(KS, ks + D, self.D0 + self.ramp * (ks + 1))
            while na < lim_a:
                fill += [(0, g) for g in aload(na)]; na += 1
            late = []
            if na == ks + D and na < KS and na < self.D0 + self.ramp * (ks + 1) and self.late:
                late = aload(na); na += 1
            if nk < KS and 'L' not in self.abl:
                for nt in range(NT): fill += [((nt + 1) * MT - 1, g) for g in wread(nk, nt)]
            i = 0
            for nt in range(NT):
                wr = vW + ((ks % PF) * NT + nt) * 4
                for j in range(MT):
                    acc = vAcc + (j * NT + nt) * 4
                    if not ('M' in self.abl and (j or nt)):
                        p(f'v_mfma_f32_16x16x32_bf16 {v(acc,4)}, {v(wr,4)}, {a(((ks%D)*MT+j)*4,4)}, {v(acc,4) if ks else 0}')
                    rem = nmf - i
                    ready = sorted([f for f in fill if f[0] <= i], key=lambda f: -f[0])
                    cap = max(self.cap, -(-len(fill) // rem))
                    for f in ready[:cap]:
                        p.extend(f[1]); fill.remove(f)
                    i += 1
            for f in fill: p.extend(f[1])
            p.extend(flat(late))
        self.prof.stamp(p)
        if 'E' not in self.abl: self.epilogue(p, locals())
        self.prof.stamp(p)
        if self.prof.on: p.wait_all()
        self.prof.finish(p, WS_END)
        p(f'{lab}:'); p('s_endpgm')
        p.resolve()
        if body:
            nbod = KS // body
            p.fold([f'b{i}' for i in range(1, nbod)], nbod - 2, f'L_{name}_loop', f's{sCnt}')
        return dict(name=name, body=p.text(), nvgpr=256 + D * MT * 4, accum=256, grid=256, block=256, lds=self.lds)
    late = False

    def setup_early(self, p, L):
        self.e = dict(st=self.vX, stl=L['vAcc'] + 16)
        if self.which == 'g3':
            sT, sMT0, vLane, sE = L['sT'], L['sMT0'], L['vLane'], L['sE']
            t0, t1 = L['t0'], L['t1']
            srd(p, sE, L['sWS'], 262144, WS_ST)
            p(f'v_and_b32 v{t0}, 15, v{vLane}'); p(f'v_lshlrev_b32 v{t0}, 3, v{t0}'); p(f'v_lshrrev_b32 v{t1}, 4, v{vLane}'); p(f'v_lshl_add_u32 v{t0}, v{t1}, 7, v{t0}')
            p(f's_lshl_b32 s{sT}, s{sMT0}, 11'); p(f'v_add_u32 v{self.vX}, s{sT}, v{t0}')

    def setup_epilogue(self, p, L):
        w = self.which; vX = self.vX; MT = self.MT
        sT, sT2, sMT0, sCB, sWS, vLane = L['sT'], L['sT2'], L['sMT0'], L['sCB'], L['sWS'], L['vLane']
        sC, sE, sF, sOdd = L['sC'], L['sE'], L['sF'], L['sOdd']
        p(f's_mov_b32 s{L["sC0"]}, {fhex(C0)}'); p(f's_mov_b32 s{L["sC1"]}, {fhex(C1)}'); p(f's_mov_b32 s{L["sOne"]}, 1.0')
        e = self.e; n = vX + 1
        def al(k=1, even=False):
            nonlocal n
            if even: n += n & 1
            r = n; n += k; return r
        e['c0'] = al(2, True); p(f'v_mov_b32 v{e["c0"]}, s{L["sC0"]}')
        t0, t1, t2 = al(), al(), al()
        if w in ('g2', 'g4'):
            e['vo'] = al()
            p(f's_lshl_b32 s{sT}, s{sMT0}, 15'); p(f's_lshl_b32 s{sT2}, s{sCB}, 11'); p(f's_add_u32 s{sT}, s{sT}, s{sT2}')
            p(f'v_lshlrev_b32 v{e["vo"]}, 4, v{vLane}'); p(f'v_add_u32 v{e["vo"]}, s{sT}, v{e["vo"]}')
            e['vo2'] = al(); p(f'v_add_u32 v{e["vo2"]}, 32768, v{e["vo"]}')
        if w == 'g1':
            srd(p, sC, sWS, 4 * MB, WS_H1); srd(p, sE, sWS, 8192, WS_S2)
            e['sc'] = al(4, True); e['srow'] = al()
            p(f'v_and_b32 v{t0}, 15, v{vLane}'); p(f's_lshl_b32 s{sT}, s{sMT0}, 4'); p(f'v_add_u32 v{t0}, s{sT}, v{t0}')
            p(f'v_lshlrev_b32 v{e["srow"]}, 2, v{t0}')
            sD = sF
            p(f's_lshr_b32 s{sT}, s{sCB}, 2'); p(f's_lshr_b32 s{sD}, s{sT}, 1'); p(f's_add_u32 s{sD}, s{sD}, 1')
            p(f's_sub_u32 s{sT2}, 0, s{sD}'); p(f's_and_b32 s{sT}, s{sT}, 1'); p(f's_cmp_eq_u32 s{sT}, 1'); p(f's_cselect_b32 s{sD}, s{sT2}, s{sD}')
            e['dst'] = al(2); e['msk'] = al(2)
            p(f's_lshl_b32 s{sT2}, s{sCB}, 11')
            for j in range(2):
                p(f'v_add_u32 v{t1}, s{sD}, v{t0}')
                if j: p(f'v_add_u32 v{t1}, 16, v{t1}')
                p(f'v_cmp_gt_u32 vcc, 0x800, v{t1}')
                p(f'v_cndmask_b32 v{e["msk"]+j}, 0, -1, vcc')
                p(f'v_and_b32 v{t1}, 0x7ff, v{t1}')
                p(f'v_lshrrev_b32 v{t2}, 4, v{t1}'); p(f'v_lshlrev_b32 v{t2}, 15, v{t2}')
                p(f'v_and_b32 v{t1}, 15, v{t1}'); p(f'v_lshl_add_u32 v{t2}, v{t1}, 4, v{t2}')
                p(f'v_and_b32 v{t1}, 48, v{vLane}'); p(f'v_lshl_add_u32 v{t2}, v{t1}, 4, v{t2}')
                p(f'v_add_u32 v{e["dst"]+j}, s{sT2}, v{t2}')
        if w == 'g2':
            srd(p, sC, sWS, 4 * MB, WS_X1); srd(p, sE, sWS, 4 * MB, WS_XP); srd(p, sF, sWS, 262144, WS_ST)
            e['res'] = al(16, True)
            p(f's_lshl_b32 s{sT}, s{sMT0}, 11'); p(f's_lshl_b32 s{sT2}, s{sCB}, 7'); p(f's_add_u32 s{sT}, s{sT}, s{sT2}')
            p(f'v_and_b32 v{t0}, 15, v{vLane}'); p(f'v_lshlrev_b32 v{t0}, 3, v{t0}'); p(f'v_add_u32 v{e["st"]}, s{sT}, v{t0}')
        if w == 'g4':
            srd(p, sC, L['sOUT'], 4 * MB); srd(p, sE, sWS, 4 * MB, WS_H); srd(p, sF, sWS, 4 * MB, WS_X1)
            e['res'] = al(16, True); e['res2'] = al(16, True); e['dst'] = al(2)
            p(f'v_and_b32 v{t0}, 15, v{vLane}'); p(f's_lshl_b32 s{sT}, s{sMT0}, 4'); p(f'v_add_u32 v{t0}, s{sT}, v{t0}'); p(f'v_lshlrev_b32 v{t0}, 11, v{t0}')
            p(f'v_bfe_u32 v{t1}, v{vLane}, 4, 1'); p(f'v_lshl_add_u32 v{t0}, v{t1}, 5, v{t0}')
            p(f'v_lshrrev_b32 v{t1}, 5, v{vLane}'); p(f'v_lshl_add_u32 v{t0}, v{t1}, 4, v{t0}')
            p(f's_lshl_b32 s{sT2}, s{sCB}, 7'); p(f'v_add_u32 v{e["dst"]}, s{sT2}, v{t0}'); p(f'v_add_u32 v{e["dst"]+1}, 32768, v{e["dst"]}')
        if w == 'g3':
            srd(p, sC, sWS, 2048 * 7168, WS_GG); srd(p, sF, sWS, 14336, WS_CS)
            e['cs'] = al(28, True); e['mr'] = al(16, True)
            e['csa'] = al(2); e['dst'] = al(4); e['dsts'] = al(4)
            p(f'v_lshrrev_b32 v{t1}, 4, v{vLane}')
            p(f's_mul_i32 s{sT}, s{sCB}, 448'); p(f's_lshl_b32 s{sT2}, s{sOdd}, 6'); p(f's_add_u32 s{sT2}, s{sT2}, s{sT}')
            p(f'v_lshlrev_b32 v{t1}, 4, v{t1}'); p(f'v_add_u32 v{e["csa"]}, s{sT2}, v{t1}')
            p(f's_cmp_eq_u32 s{sOdd}, 1'); p(f's_cselect_b32 s{sT2}, 0, 384'); p(f's_add_u32 s{sT2}, s{sT2}, s{sT}'); p(f'v_add_u32 v{e["csa"]+1}, s{sT2}, v{t1}')
            p(f's_mul_i32 s{sT}, s{sCB}, 7'); p(f's_add_u32 s{sT2}, s{sT}, s{sOdd}'); p(f's_lshl_b32 s{sT2}, s{sT2}, 9')
            p(f's_mul_i32 s{L["sCnt"]}, s{sMT0}, {112*1024}'); p(f's_add_u32 s{sT2}, s{sT2}, s{L["sCnt"]}')
            p(f'v_lshlrev_b32 v{t0}, 4, v{vLane}')
            for j in range(4): p(f'v_add_u32 v{e["dst"]+j}, s{sT2}, v{t0}'); p(f's_add_u32 s{sT2}, s{sT2}, {112*1024}')
            p(f's_mov_b32 s{sT}, 3072'); p(f's_cmp_eq_u32 s{sOdd}, 1'); p(f's_cselect_b32 s{sT2}, {(-1024 + 8) & 0xffffffff}, s{sT}')
            for j in range(4): p(f'v_add_u32 v{e["dsts"]+j}, s{sT2}, v{e["dst"]+j}')
        e['tmp'] = al(32, True)
        self.vmax = n
        assert n <= 256, n

    def epilogue_loads(self, p, L):
        w = self.which; e = self.e; sE, sF = L['sE'], L['sF']
        if w == 'g1':
            for j in range(2): p(f'buffer_load_dword v{e["sc"]+2*j}, v{e["srow"]}, s[{sE}:{sE+3}], 0 offen offset:{64*j}')
        if w in ('g2', 'g4'):
            for j in range(2):
                for q in range(2):
                    vo = e['vo2'] if j else e['vo']
                    p(f'buffer_load_dwordx4 {v(e["res"]+(j*2+q)*4,4)}, v{vo}, s[{sE}:{sE+3}], 0 offen offset:{q*1024}')
                    if w == 'g4': p(f'buffer_load_dwordx4 {v(e["res2"]+(j*2+q)*4,4)}, v{vo}, s[{sF}:{sF+3}], 0 offen offset:{q*1024}')
        if w == 'g3':
            for u in range(6): p(f'buffer_load_dwordx4 {v(e["cs"]+4*u,4)}, v{e["csa"]}, s[{sF}:{sF+3}], 0 offen offset:{64*u}')
            p(f'buffer_load_dwordx4 {v(e["cs"]+24,4)}, v{e["csa"]+1}, s[{sF}:{sF+3}], 0 offen')

    def early_loads(self, p, L):
        e = self.e; sE = L['sE']
        if self.which == 'g3':
            p(f's_mov_b32 s{L["sT"]}, 0')
            for j in range(4):
                for q in range(4):
                    p(f'buffer_load_dwordx2 {v(e["stl"]+(j*4+q)*2,2)}, v{e["st"]}, s[{sE}:{sE+3}], s{L["sT"]} offen offset:{(j%2)*2048+q*512}')
                if j == 1: p(f's_mov_b32 s{L["sT"]}, 4096')

    def early_work(self, p, L):
        e = self.e
        if self.which == 'g3':
            stl, mr, tmp = e['stl'], e['mr'], e['tmp']
            for j in range(4):
                b = stl + 8 * j
                p(f'v_pk_add_f32 {v(b,2)}, {v(b,2)}, {v(b+2,2)}'); p(f'v_pk_add_f32 {v(b+4,2)}, {v(b+4,2)}, {v(b+6,2)}')
            for j in range(4): p(f'v_pk_add_f32 {v(stl+8*j,2)}, {v(stl+8*j,2)}, {v(stl+8*j+4,2)}')
            self.xor_reduce(p, [stl + 8 * j + h for j in range(4) for h in range(2)], tmp)
            for j in range(4):
                m, sg, k0, k1 = (mr + 4 * j + i for i in range(4))
                p(f'v_mul_f32 v{m}, {fhex(1/1024)}, v{stl+8*j}'); p(f'v_mul_f32 v{sg}, {fhex(1/1024)}, v{stl+8*j+1}')
                p(f'v_fma_f32 v{sg}, -v{m}, v{m}, v{sg}'); p(f'v_max_f32 v{sg}, 0, v{sg}'); p(f'v_add_f32 v{sg}, {fhex(1e-5)}, v{sg}')
                p(f'v_rsq_f32 v{k0}, v{sg}'); p(f'v_sqrt_f32 v{sg}, v{sg}')
                p(f'v_mul_f32 v{k1}, v{k0}, v{k0}'); p(f'v_mul_f32 v{k1}, v{k1}, v{k0}')
                p(f'v_mul_f32 v{k0}, s{L["sC0"]}, v{k0}'); p(f'v_mul_f32 v{k1}, s{L["sC1"]}, v{k1}')

    def gelu(self, p, L, regs, t, rc=None):
        c0 = self.e['c0']; sC1, sOne = L['sC1'], L['sOne']
        T = [t + 2 * i for i in range(len(regs))]
        for x, y in zip(regs, T): p(f'v_pk_mul_f32 {v(y,2)}, {v(x,2)}, {v(x,2)}')
        for x, y in zip(regs, T):
            if rc is None: p(f'v_pk_fma_f32 {v(y,2)}, {v(y,2)}, {s(sC1,2)}, {v(c0,2)} op_sel_hi:[1,0,0]')
            else: p(f'v_pk_fma_f32 {v(y,2)}, {v(y,2)}, {v(rc+2,2)}, {v(rc+2,2)} op_sel:[0,1,0] op_sel_hi:[1,1,0]')
        for x, y in zip(regs, T): p(f'v_pk_mul_f32 {v(y,2)}, {v(y,2)}, {v(x,2)}')
        for y in T:
            for h in range(2): p(f'v_exp_f32 v{y+h}, v{y+h}')
        for y in T:
            if rc is None: p(f'v_pk_add_f32 {v(y,2)}, {v(y,2)}, {s(sOne,2)} op_sel_hi:[1,0]')
            else: p(f'v_pk_fma_f32 {v(y,2)}, {v(y,2)}, {v(rc,2)}, {v(rc,2)} op_sel:[0,1,1] op_sel_hi:[1,1,1]')
        for y in T:
            for h in range(2): p(f'v_rcp_f32 v{y+h}, v{y+h}')
        for x, y in zip(regs, T): p(f'v_pk_mul_f32 {v(x,2)}, {v(y,2)}, {v(x,2)}')

    def xor_reduce(self, p, regs, tmp):
        for sw in ('v_permlane16_swap_b32', 'v_permlane32_swap_b32'):
            for i, r in enumerate(regs): p(f'v_mov_b32 v{tmp+i}, v{r}')
            for i, r in enumerate(regs): p(f'{sw} v{r}, v{tmp+i}')
            for i, r in enumerate(regs): p(f'v_add_f32 v{r}, v{r}, v{tmp+i}')

    def epilogue(self, p, L):
        w = self.which; e = self.e; MT, NT = self.MT, self.NT; ST = self.st
        vAcc = L['vAcc']; sC, sE, sF = L['sC'], L['sE'], L['sF']; tmp = e['tmp']
        acc = lambda j, nt: vAcc + (j * NT + nt) * 4
        if w == 'g1':
            for j in range(2):
                prs = [acc(j, nt) + 2 * h for nt in range(4) for h in range(2)]
                for x in prs: p(f'v_pk_mul_f32 {v(x,2)}, {v(x,2)}, {v(e["sc"]+2*j,2)} op_sel_hi:[1,0]')
                self.gelu(p, L, prs, tmp)
                o = tmp + 16 + 8 * j
                for q in range(2):
                    oq = o + 4 * q
                    for i in range(4): p(f'v_cvt_pk_bf16_f32 v{oq+i}, v{prs[4*q+i]}, v{prs[4*q+i]+1}')
                    for i in range(4): p(f'v_and_b32 v{oq+i}, v{e["msk"]+j}, v{oq+i}')
                    p(f'buffer_store_dwordx4 {v(oq,4)}, v{e["dst"]+j}, s[{sC}:{sC+3}], 0 offen offset:{q*1024}{ST}')
        if w in ('g2', 'g4'):
            for j in range(2):
                for q in range(2):
                    for src in (['res', 'res2'] if w == 'g4' else ['res']):
                        rr = e[src] + (j * 2 + q) * 4
                        for i in range(4):
                            tt = tmp + 2 * i
                            p(f'v_lshlrev_b32 v{tt}, 16, v{rr+i}'); p(f'v_and_b32 v{tt+1}, 0xffff0000, v{rr+i}')
                        for i in range(4):
                            x = acc(j, 2 * q + i // 2) + 2 * (i % 2)
                            p(f'v_pk_add_f32 {v(x,2)}, {v(x,2)}, {v(tmp+2*i,2)}')
                    oq = tmp + 8 + 4 * (j * 2 + q)
                    for i in range(4):
                        x = acc(j, 2 * q + i // 2) + 2 * (i % 2)
                        p(f'v_cvt_pk_bf16_f32 v{oq+i}, v{x}, v{x+1}')
                    if w == 'g2':
                        vo = e['vo2'] if j else e['vo']
                        p(f'buffer_store_dwordx4 {v(oq,4)}, v{vo}, s[{sC}:{sC+3}], 0 offen offset:{q*1024}{ST}')
                    else:
                        p(f'v_permlane16_swap_b32 v{oq}, v{oq+2}'); p(f'v_permlane16_swap_b32 v{oq+1}, v{oq+3}')
                        p(f'buffer_store_dwordx4 {v(oq,4)}, v{e["dst"]+j}, s[{sC}:{sC+3}], 0 offen offset:{q*64}{ST}')
            if w == 'g2':
                r = e['res']
                for j in range(2):
                    sm, sq = r + 4 * j, r + 4 * j + 2
                    xs = [acc(j, nt) + 2 * h for nt in range(4) for h in range(2)]
                    p(f'v_pk_add_f32 {v(sm,2)}, {v(xs[0],2)}, {v(xs[1],2)}'); p(f'v_pk_mul_f32 {v(sq,2)}, {v(xs[0],2)}, {v(xs[0],2)}')
                    p(f'v_pk_fma_f32 {v(sq,2)}, {v(xs[1],2)}, {v(xs[1],2)}, {v(sq,2)}')
                    for x in xs[2:]:
                        p(f'v_pk_add_f32 {v(sm,2)}, {v(sm,2)}, {v(x,2)}'); p(f'v_pk_fma_f32 {v(sq,2)}, {v(x,2)}, {v(x,2)}, {v(sq,2)}')
                for j in range(2):
                    sm = r + 4 * j
                    p(f'v_add_f32 v{sm}, v{sm}, v{sm+1}'); p(f'v_add_f32 v{sm+1}, v{sm+2}, v{sm+3}')
                self.xor_reduce(p, [r, r + 1, r + 4, r + 5], tmp)
                p('s_mov_b64 exec, 0xffff')
                for j in range(2): p(f'buffer_store_dwordx2 {v(r+4*j,2)}, v{e["st"]}, s[{sF}:{sF+3}], 0 offen offset:{2048*j}{ST}')
                p('s_mov_b64 exec, -1')
        if w == 'g3':
            mr, cs = e['mr'], e['cs']
            for j in range(4):
                m = mr + 4 * j
                for grp in ([0, 1, 2, 3], [4, 5, 6]):
                    prs = [(acc(j, nt) + 2 * h, cs + 4 * nt + 2 * h) for nt in grp for h in range(2)]
                    for x, c in prs: p(f'v_pk_fma_f32 {v(x,2)}, {v(c,2)}, {v(m,2)}, {v(x,2)} op_sel_hi:[1,0,1] neg_lo:[0,1,0] neg_hi:[0,1,0]')
                    self.gelu(p, L, [x for x, c in prs], tmp, rc=m)
                    o = tmp + 16 + (0 if grp[0] == 0 else 8)
                    for i, (x, c) in enumerate(prs): p(f'v_cvt_pk_bf16_f32 v{o+i}, v{x}, v{x+1}')
                    pq = grp[0] // 2
                    p(f'buffer_store_dwordx4 {v(o,4)}, v{e["dst"]+j}, s[{sC}:{sC+3}], 0 offen offset:{pq*1024}{ST}')
                    if grp[0] == 0: p(f'buffer_store_dwordx4 {v(o+4,4)}, v{e["dst"]+j}, s[{sC}:{sC+3}], 0 offen offset:{(pq+1)*1024}{ST}')
                    else: p(f'buffer_store_dwordx2 {v(o+4,2)}, v{e["dsts"]+j}, s[{sC}:{sC+3}], 0 offen{ST}')
```

```python
from asmlib import *
NAME = 'sequential_preLN__spectral_gfnet__mixer_s_mlp__prompt'
HEADER = """; Kernarg layout (88 bytes, pointers only, base s[0:1]):
"""
def kernel_text(name, body, nvgpr, accum, nsgpr=102):
    t = f".globl {name}\n.p2align 8\n.type {name},@function\n{name}:\n{body}"
    d = f""".p2align 6
.amdhsa_kernel {name}
  .amdhsa_next_free_vgpr {nvgpr}
  .amdhsa_next_free_sgpr {nsgpr}
  .amdhsa_accum_offset {accum}
  .amdhsa_group_segment_fixed_size 0
  .amdhsa_kernarg_size 88
  .amdhsa_user_sgpr_count 2
  .amdhsa_user_sgpr_kernarg_segment_ptr 1
  .amdhsa_system_sgpr_workgroup_id_x 1
  .amdhsa_float_denorm_mode_32 3
.end_amdhsa_kernel
"""
    return t, d
def assemble_file(kernels, header=HEADER):
    out = header
    for k in kernels:
        out += f"; @launch kernel={k['name']} grid=({k['grid']},1,1) block=({k['block']},1,1) lds={k['lds']}\n"
    out += '.amdgcn_target "amdgcn-amd-amdhsa--gfx950"\n.text\n'
    seen = set(); descs = ''
    for k in kernels:
        if k['name'] in seen: continue
        seen.add(k['name'])
        t, d = kernel_text(k['name'], k['body'], k['nvgpr'], k['accum'], k.get('nsgpr', 102))
        out += t; descs += d
    out += '.section .rodata,"a"\n' + descs
    return out
def srd(p, d, base, nbytes, off=0):
    if off:
        p(f's_add_u32 s{d}, s{base}, {off}')
        p(f's_addc_u32 s{d+1}, s{base+1}, 0')
    else:
        p(f's_mov_b32 s{d}, s{base}')
        p(f's_mov_b32 s{d+1}, s{base+1}')
    p(f's_mov_b32 s{d+2}, {nbytes}')
    p(f's_mov_b32 s{d+3}, 0x20000')

class Prof:
    def __init__(self, on, base=60, sws=6): self.on = on; self.n = 0; self.base = base; self.sws = sws
    def stamp(self, p):
        if not self.on: return
        p(f's_memtime s[{self.base+2*self.n}:{self.base+2*self.n+1}]'); self.n += 1
    def start(self, p):
        if not self.on: return
        p(f's_memrealtime s[{self.base-2}:{self.base-1}]'); self.stamp(p)
    def finish(self, p, off):
        if not self.on: return
        self.stamp(p)
        b = self.base + 2 * self.n
        p(f's_memrealtime s[{b}:{b+1}]')
        p.wait_all()
        srd(p, 96, self.sws, 1 << 20, off)
        p('v_lshrrev_b32 v1, 6, v0')
        p(f's_lshl_b32 s95, s2, 2'); p(f's_add_u32 s95, s95, s32'); p('s_lshl_b32 s95, s95, 7')
        p('v_mov_b32 v2, s95')
        vals = [self.base - 2] + [self.base + 2 * i for i in range(self.n + 1)]
        for i, r in enumerate(vals):
            p(f'v_mov_b32 v3, s{r}'); p(f'buffer_store_dword v3, v2, s[96:99], 0 offen offset:{4*i}')
```

```python
MB = 1 << 20
WS_XF = 0 * MB
WS_WT = 4 * MB
WS_G  = 8 * MB
WS_H  = 12 * MB
WS_XP = 16 * MB
WS_H1 = 20 * MB
WS_X1 = 24 * MB
WS_GG = 28 * MB
WS_S2 = 44 * MB
WS_ST = 44 * MB + 65536
WS_CS = 45 * MB
WS_END = 46 * MB
```

```python
from gen import *
ks = build()
empty = dict(name='nop_kernel', body='    s_endpgm\n', nvgpr=8, accum=8, grid=256, block=64, lds=0, nsgpr=16)
open('../cdna_kernels/v_base.s', 'w').write(assemble_file(ks))
open('../cdna_kernels/v_pre4.s', 'w').write(assemble_file([empty] * 4 + ks))
open('../cdna_kernels/v_post4.s', 'w').write(assemble_file(ks + [empty] * 4))
open('../cdna_kernels/v_pre12.s', 'w').write(assemble_file([empty] * 12 + ks))
```

```python
from asmlib import *
NAME = 'sequential_preLN__spectral_gfnet__mixer_s_mlp__prompt'
HEADER = """; Kernarg layout (88 bytes, pointers only, base s[0:1]):
"""
def kernel_text(name, body, nvgpr, accum, nsgpr=102):
    t = f".globl {name}\n.p2align 8\n.type {name},@function\n{name}:\n{body}"
    d = f""".p2align 6
.amdhsa_kernel {name}
  .amdhsa_next_free_vgpr {nvgpr}
  .amdhsa_next_free_sgpr {nsgpr}
  .amdhsa_accum_offset {accum}
  .amdhsa_group_segment_fixed_size 0
  .amdhsa_kernarg_size 88
  .amdhsa_user_sgpr_count 2
  .amdhsa_user_sgpr_kernarg_segment_ptr 1
  .amdhsa_system_sgpr_workgroup_id_x 1
  .amdhsa_float_denorm_mode_32 3
.end_amdhsa_kernel
"""
    return t, d
def assemble_file(kernels, header=HEADER):
    out = header
    for k in kernels:
        out += f"; @launch kernel={k['name']} grid=({k['grid']},1,1) block=({k['block']},1,1) lds={k['lds']}\n"
    out += '.amdgcn_target "amdgcn-amd-amdhsa--gfx950"\n.text\n'
    seen = set(); descs = ''
    for k in kernels:
        if k['name'] in seen: continue
        seen.add(k['name'])
        t, d = kernel_text(k['name'], k['body'], k['nvgpr'], k['accum'], k.get('nsgpr', 102))
        out += t; descs += d
    out += 'L_text_end:\n    s_endpgm\n.section .rodata,"a"\n' + descs
    return out
def srd(p, d, base, nbytes, off=0):
    if off:
        p(f's_add_u32 s{d}, s{base}, {off}')
        p(f's_addc_u32 s{d+1}, s{base+1}, 0')
    else:
        p(f's_mov_b32 s{d}, s{base}')
        p(f's_mov_b32 s{d+1}, s{base+1}')
    p(f's_mov_b32 s{d+2}, {nbytes}')
    p(f's_mov_b32 s{d+3}, 0x20000')

class Prof:
    def __init__(self, on, base=60, sws=6): self.on = on; self.n = 0; self.base = base; self.sws = sws
    def stamp(self, p):
        if not self.on: return
        p(f's_memtime s[{self.base+2*self.n}:{self.base+2*self.n+1}]'); self.n += 1
    def start(self, p):
        if not self.on: return
        p(f's_memrealtime s[{self.base-2}:{self.base-1}]'); self.stamp(p)
    def finish(self, p, off):
        if not self.on: return
        self.stamp(p)
        b = self.base + 2 * self.n
        p(f's_memrealtime s[{b}:{b+1}]')
        p.wait_all()
        srd(p, 96, self.sws, 1 << 20, off)
        p('v_lshrrev_b32 v1, 6, v0')
        p(f's_lshl_b32 s95, s2, 2'); p(f's_add_u32 s95, s95, s32'); p('s_lshl_b32 s95, s95, 7')
        p('v_mov_b32 v2, s95')
        vals = [self.base - 2] + [self.base + 2 * i for i in range(self.n + 1)]
        for i, r in enumerate(vals):
            p(f'v_mov_b32 v3, s{r}'); p(f'buffer_store_dword v3, v2, s[96:99], 0 offen offset:{4*i}')

def dbg_stamp(p, idx, back, sbase=90, v0=250):
    p(f's_load_dwordx2 s[{sbase}:{sbase+1}], s[0:1], 72'); p(f's_memrealtime s[{sbase+2}:{sbase+3}]')
    p('s_waitcnt lgkmcnt(0)')
    p(f's_add_u32 s{sbase+4}, s{sbase}, {-back*512}'); p(f's_addc_u32 s{sbase+5}, s{sbase+1}, 0'); p(f's_mov_b32 s{sbase+6}, 256'); p(f's_mov_b32 s{sbase+7}, 0x20000')
    p(f'v_mov_b32 v{v0}, s{sbase+2}'); p(f'v_mov_b32 v{v0+1}, {idx*4}')
    p(f's_cmp_eq_u32 s2, 0'); p(f's_cselect_b32 s{sbase+6}, 256, 0')
    p(f'buffer_store_dword v{v0}, v{v0+1}, s[{sbase+4}:{sbase+7}], 0 offen')
```

```python
from gen import *
import sys
def stamped(ks):
    out = []
    for i, k in enumerate(ks):
        k = dict(k)
        a_ = Prog(); dbg_stamp(a_, 2 * i, i - len(ks) + 1, 88, 1); a_.resolve()
        b_ = Prog(); dbg_stamp(b_, 2 * i + 1, i - len(ks) + 1, 88, 1); b_.resolve()
        body = k['body']
        lines = body.split('\n')
        j = next(n for n, l in enumerate(lines) if 's_cbranch_scc1 L_' in l)
        lines.insert(j + 1, a_.text().rstrip('\n'))
        j = next(n for n, l in enumerate(lines) if l.startswith('L_') and l.endswith('_end:'))
        lines.insert(j, '    s_waitcnt vmcnt(0) lgkmcnt(0)\n    s_nop 15\n' + b_.text().rstrip('\n'))
        k['body'] = '\n'.join(lines)
        out.append(k)
    return out
if __name__ == '__main__':
    ks = build()
    open('../cdna_kernels/v_stamp.s', 'w').write(assemble_file(stamped(ks)))
```
